```python
import torch

def _softmax(x, axis=-1):
    return torch.softmax(x, dim=axis)
def _gelu(x):
    return torch.nn.functional.gelu(x, approximate="tanh")
def _silu(x):
    return torch.nn.functional.silu(x)
def _sigmoid(x):
    return torch.sigmoid(x)
def _layernorm(x, axis=-1, eps=1e-5):
    m = x.mean(dim=axis, keepdim=True)
    v = x.var(dim=axis, keepdim=True, unbiased=False)
    return (x - m) / torch.sqrt(v + eps)
def _scatter_add(tgt, idx, src, axis=0):
    return tgt.clone().index_add_(axis, idx, src)
def _segment_sum(src, seg, n):
    out = torch.zeros((n,) + src.shape[1:], dtype=src.dtype)
    return out.index_add_(0, seg, src)
def _pad(x, pw):
    flat = tuple(v for pair in reversed(pw) for v in pair)
    return torch.nn.functional.pad(x, flat)

kernel_name = 'interleave_layers__gqa_block_cached__glu_gated_geglu__decode'

def setup_inputs():

    _w = (lambda a: (lambda t: t.to(torch.bfloat16) if t.is_floating_point() else t)(torch.as_tensor(a)))
    def _A_setup():
        B, Sq, D = 1, 1, 576
        Hq, Hkv, Sk, Dh = 32, 16, 65536, 128
        assert Hq % Hkv == 0, (Hq, Hkv)
        return {
            "x": _w((lambda *s: torch.randn(*s, dtype=torch.bfloat16) * 0.05)(B, Sq, D)),
            "k_cache": _w((lambda *s: torch.randn(*s, dtype=torch.bfloat16) * 0.8)(B, Hkv, Sk, Dh)),
            "v_cache": _w((lambda *s: torch.randn(*s, dtype=torch.bfloat16) * 1.6)(B, Hkv, Sk, Dh)),
            "wq": _w((lambda *s: torch.randn(*s, dtype=torch.bfloat16) * 0.8)(D, Hq * Dh) * (D ** -0.5)),
            "wo": _w((lambda *s: torch.randn(*s, dtype=torch.bfloat16) * 1.6)(Hq * Dh, D) * ((Hq * Dh) ** -0.5)),
        }
    _A_in = _A_setup()

    def _B_setup():
        B, S, Dm, Df = 1, 1, 576, 4608
        return {
            "x": _w((lambda *s: torch.randn(*s, dtype=torch.bfloat16) * 0.05)(B, S, Dm)),
            "w_gate": _w((lambda *s: torch.randn(*s, dtype=torch.bfloat16) * 0.4)(Dm, Df) * (Dm ** -0.5)),
            "w_up": _w((lambda *s: torch.randn(*s, dtype=torch.bfloat16) * 0.4)(Dm, Df) * (Dm ** -0.5)),
            "w_down": _w((lambda *s: torch.randn(*s, dtype=torch.bfloat16) * 0.4)(Df, Dm) * (Df ** -0.5)),
        }
    _B_in = _B_setup()

    return {
        "A_x": _A_in["x"],
        "A_k_cache": _A_in["k_cache"],
        "A_v_cache": _A_in["v_cache"],
        "A_wq": _A_in["wq"],
        "A_wo": _A_in["wo"],
        "B_x": _B_in["x"],
        "B_w_gate": _B_in["w_gate"],
        "B_w_up": _B_in["w_up"],
        "B_w_down": _B_in["w_down"],
    }

def reference(A_x, A_k_cache, A_v_cache, A_wq, A_wo, B_x, B_w_gate, B_w_up, B_w_down):
    def _A_ref(x, k_cache, v_cache, wq, wo):
        B, Sq, D = x.shape
        Hq, Dh = 32, 128
        Hkv = k_cache.shape[1]
        rep = Hq // Hkv
        q = (lambda x, *d: x.permute(*d))((x @ wq).reshape(B, Sq, Hq, Dh), 0, 2, 1, 3)
        k = (lambda x, n, axis: torch.repeat_interleave(x, n, dim=axis))(k_cache, rep, axis=1)
        v = (lambda x, n, axis: torch.repeat_interleave(x, n, dim=axis))(v_cache, rep, axis=1)
        scores = torch.einsum("bhqd,bhkd->bhqk", q, k) * (Dh ** -0.5)
        p = _softmax(scores, axis=-1)
        o = torch.einsum("bhqk,bhkd->bhqd", p, v)
        return (lambda x, *d: x.permute(*d))(o, 0, 2, 1, 3).reshape(B, Sq, Hq * Dh) @ wo

    def _B_ref(x, w_gate, w_up, w_down):
        g = torch.einsum("bsd,df->bsf", x, w_gate)
        u = torch.einsum("bsd,df->bsf", x, w_up)
        h = _gelu(g) * u
        return torch.einsum("bsf,fd->bsd", h, w_down)

    x = A_x
    x = x + _A_ref(_layernorm(x, axis=-1), A_k_cache, A_v_cache, A_wq, A_wo)
    x = x + _B_ref(_layernorm(x, axis=-1), B_w_gate, B_w_up, B_w_down)
    x = x + _A_ref(_layernorm(x, axis=-1), A_k_cache, A_v_cache, A_wq, A_wo)
    x = x + _B_ref(_layernorm(x, axis=-1), B_w_gate, B_w_up, B_w_down)
    return x
```

```python
import re

TRANS = ("v_exp_f32", "v_log_f32", "v_rcp_f32", "v_rsq_f32", "v_sqrt_f32", "v_sin_f32", "v_cos_f32")
NODST_S = ("s_cmp", "s_cbranch", "s_waitcnt", "s_barrier", "s_nop", "s_branch", "s_setprio", "s_endpgm",
           "s_sleep", "s_bitcmp")

_reg_re = re.compile(r"^-?\|?([vas])(\d+)\|?$")
_rng_re = re.compile(r"^-?\|?([vas])\[(\d+):(\d+)\]\|?$")


def regs_of(op):
    op = op.strip()
    m = _reg_re.match(op)
    if m:
        return [(m.group(1), int(m.group(2)))]
    m = _rng_re.match(op)
    if m:
        return [(m.group(1), k) for k in range(int(m.group(2)), int(m.group(3)) + 1)]
    if op in ("vcc", "vcc_lo", "vcc_hi"):
        return [("vcc", 0)]
    if op in ("exec", "exec_lo", "exec_hi"):
        return [("exec", 0)]
    if op == "m0":
        return [("m0", 0)]
    return []


class Ins:
    __slots__ = ("text", "op", "cls", "w", "r", "dpp", "lds", "ops", "mf_c", "mf_ab", "stdata", "states")

    def __init__(self, text):
        self.text = text
        t = text.split(";")[0].strip()
        parts = t.split(None, 1)
        self.op = parts[0]
        rest = parts[1] if len(parts) > 1 else ""
        ops, cur, depth = [], "", 0
        for ch in rest:
            if ch == "[":
                depth += 1
            if ch == "]":
                depth -= 1
            if ch == "," and depth == 0:
                ops.append(cur.strip())
                cur = ""
            else:
                cur += ch
        if cur.strip():
            ops.append(cur.strip())
        mods = []
        if ops:
            toks = ops[-1].split()
            ops[-1] = toks[0]
            mods = toks[1:]
        self.ops = ops
        op = self.op
        self.w, self.r = set(), set()
        self.dpp = any(m.startswith(("row_", "quad_perm", "wave_")) for m in mods) or op.endswith("_dpp")
        self.lds = "lds" in mods
        self.mf_c, self.mf_ab, self.stdata = set(), set(), set()
        self.states = 1
        R = lambda k: set(regs_of(ops[k])) if k < len(ops) else set()
        allsrc = lambda k0: set().union(*[R(k) for k in range(k0, len(ops))]) if len(ops) > k0 else set()
        if op.startswith("v_mfma"):
            self.cls = "mfma"
            self.w = R(0)
            self.mf_ab = R(1) | R(2)
            self.mf_c = R(3)
            self.r = self.mf_ab | self.mf_c
        elif op.startswith("v_"):
            self.cls = "valu"
            self.w = R(0)
            self.r = allsrc(1)
            if op.startswith("v_permlane"):
                self.w = R(0) | R(1)
                self.r = R(0) | R(1)
            if op.startswith(("v_fmac", "v_mac", "v_dot2c")) or self.dpp:
                self.r |= R(0)
            if op.startswith(("v_add_co", "v_sub_co", "v_addc_co", "v_subb_co")):
                self.w |= R(1)
                self.r = allsrc(2)
        elif op.startswith(("buffer_", "global_")):
            self.cls = "vmem"
            if "load" in op:
                if self.lds:
                    self.r = allsrc(0) | {("m0", 0)}
                else:
                    self.w = R(0)
                    self.r = allsrc(1)
            else:
                self.r = allsrc(0)
                if "x4" in op or "x3" in op:
                    self.stdata = R(0)
        elif op.startswith("ds_"):
            self.cls = "ds"
            if op.startswith(("ds_read", "ds_bpermute", "ds_permute", "ds_swizzle")):
                self.w = R(0)
                self.r = allsrc(1)
            else:
                self.r = allsrc(0)
        elif op.startswith("s_"):
            self.cls = "salu"
            if op == "s_nop":
                self.states = int(ops[0], 0) + 1
            elif op.startswith(NODST_S):
                self.r = allsrc(0)
            else:
                self.w = R(0)
                self.r = allsrc(1)
                if "saveexec" in op:
                    self.w |= {("exec", 0)}
        else:
            raise ValueError("unknown instruction: " + text)


def need_states(p, c):
    n = 0
    vw = {x for x in p.w if x[0] in "va"}
    sw = {x for x in p.w if x[0] in ("s", "vcc")}
    if p.cls == "valu":
        if c.cls == "mfma" and vw & c.r:
            n = max(n, 2)
        if c.cls == "valu":
            if sw & c.r:
                n = max(n, 4 if c.op.startswith(("v_readlane", "v_writelane")) else 2)
            if vw & c.r:
                if c.dpp or c.op.startswith("v_permlane"):
                    n = max(n, 2)
                if c.op.startswith(("v_readlane", "v_readfirstlane")):
                    n = max(n, 1)
                if p.op.startswith(TRANS) and not c.op.startswith(TRANS):
                    n = max(n, 1)
            if p.op.startswith(TRANS) and (vw & c.w):
                n = max(n, 1)
        if c.cls == "vmem" and sw & c.r:
            n = max(n, 5)
    if p.cls == "mfma":
        if c.cls == "valu" and (p.w & (c.r | c.w)):
            n = max(n, 8)
        if c.cls in ("vmem", "ds") and (p.w & (c.r | c.w)):
            n = max(n, 8)
        if c.cls == "mfma":
            if p.w & c.mf_ab:
                n = max(n, 8)
            if p.w & c.mf_c and p.w != c.mf_c:
                n = max(n, 6)
        if c.cls == "valu" and (p.mf_c & c.w):
            n = max(n, 3)
    if p.cls == "salu" and ("m0", 0) in p.w and c.cls == "vmem" and c.lds:
        n = max(n, 1)
    if p.cls == "vmem" and p.stdata and (p.stdata & c.w):
        n = max(n, 2)
    return n


class Asm:
    def __init__(self):
        self.out = []
        self.hist = []
        self.pos = 0
        self.vmq = []
        self.nlab = 0
        self.count = 0

    def raw(self, s):
        self.out.append(s)

    def comment(self, s):
        self.out.append("    ; " + s)

    def label(self, name):
        self.out.append(name + ":")

    def newlabel(self, base="L"):
        self.nlab += 1
        return f"{base}_{self.nlab}"

    def e(self, text):
        ins = Ins(text)
        need = 0
        for p, ppos in self.hist:
            n = need_states(p, ins)
            if n:
                dist = self.pos - ppos - p.states
                need = max(need, n - dist)
        if need > 0:
            self._nop(need)
        self.out.append("    " + text)
        self.hist.append((ins, self.pos))
        self.pos += ins.states
        self.count += 1
        if len(self.hist) > 40:
            self.hist = self.hist[-40:]

    def _nop(self, n):
        while n > 0:
            k = min(n, 8)
            t = f"s_nop {k - 1}"
            ins = Ins(t)
            self.out.append("    " + t)
            self.hist.append((ins, self.pos))
            self.pos += k
            n -= k

    def flush(self):
        self._nop(10)

    def snapshot(self):
        return (list(self.hist), self.pos)

    def restore(self, snap):
        self.hist, self.pos = list(snap[0]), snap[1]

    def vm(self, text, tag=None):
        self.e(text)
        self.vmq.append(tag)
        assert len(self.vmq) <= 63, "too many outstanding vm ops"

    def wait_vm(self, tag):
        idx = -1
        for k, t in enumerate(self.vmq):
            if t == tag:
                idx = k
        if idx < 0:
            return
        n = len(self.vmq) - 1 - idx
        self.e(f"s_waitcnt vmcnt({n})")
        self.vmq = self.vmq[idx + 1:]

    def wait_vm_all(self, extra=""):
        self.e("s_waitcnt vmcnt(0)" + extra)
        self.vmq = []

    def text(self):
        return "\n".join(self.out) + "\n"
```

```python
import sys, os, struct
sys.path.insert(0, os.path.dirname(__file__))
from asmlib import Asm

NAME = "interleave_layers__gqa_block_cached__glu_gated_geglu__decode"

P = dict(
    NR=13,
    NKL=4,
    RING=5,
    DMAX=6,
    DEBUG_TS=0,
    REVERSE=1,
    SPIN=200000,
)
for a in sys.argv[1:]:
    if "=" in a:
        k, v = a.split("=")
        if k in P:
            P[k] = int(v)
NR, NKL, RING, DMAX = P["NR"], P["NKL"], P["RING"], P["DMAX"]
NV = 64


def f32(x):
    return "0x%08x" % struct.unpack("<I", struct.pack("<f", x))[0]


WAVE_LDS = (RING + NKL) * 4096
SCR = 4 * WAVE_LDS
SCR_O, SCR_ML, SCR_Y, SCR_RED = SCR, SCR + 4096, SCR + 6144, SCR + 8704
LDS_BYTES = 163840
SCR_Q = SCR + 10752
assert SCR_RED + 2048 <= SCR_Q and SCR_Q + 4096 <= LDS_BYTES

BLK = 0x140000
O_PB, O_PD, O_RAO, O_RAML, O_QB, O_XB0, O_XB1 = 0x0, 0x90000, 0xE4000, 0x124000, 0x12C000, 0x12E000, 0x12E800
CLEAR_BYTES = 2 * BLK
QB0 = 0x300000
WS_TS = 0x400000
WS_SIZE = 0x800000

S_K, S_V, S_WQ, S_WO, S_WG, S_WU, S_WD, S_WS, S_DBG, S_X, S_OUT = [f"s[{4*k+4}:{4*k+7}]" for k in range(11)]
sKV, sT, sC, sTHR, sHK, sSP, sLW = "s48", "s49", "s50", "s51", "s52", "s53", "s54"
sA, sB, sD, sE = "s55", "s56", "s57", "s58"
M_N8, M_DIAG, M_MAT0, M_MAT1 = "s[62:63]", "s[64:65]", "s[66:67]", "s[68:69]"
sF, sRHO, sSPIN = "s70", "s72", "s73"
TS0 = 82

vLANE = 0
vKOFF = [4, 5, 6, 7]
vVOFF = 8
vDSK = [9, 10, 11, 12]
vM = [13, 14, 15, 16]
vNEGM, vL0, vL1 = 17, 18, 19
vO, vS, vT, vPK = 20, 24, 28, 32
vX, vY = 36, 37
vC0 = 38
vXS = 44
vCLR = 3
M_EVEN = "s[74:75]"
vKF, vQF = 48, 64
V_RV2 = 80
A_RING = 0
A_RV = RING * 16
N_RV_A = (256 - A_RV) // 16
V_RK = V_RV2 + 16 * max(0, NR - N_RV_A)
assert V_RK + 16 * (NR - NKL) <= 256, (V_RK, NR, NKL)


def vr(b, n=4):
    return f"v[{b}:{b+n-1}]"


def ar(b, n=4):
    return f"a[{b}:{b+n-1}]"


g = Asm()
e = g.e
stubs = []


def ts(k):
    if P["DEBUG_TS"]:
        e("s_memrealtime s[80:81]")
        e("s_waitcnt lgkmcnt(0)")
        e(f"s_mov_b32 s{TS0+k}, s80")


class Visit:
    def __init__(s, kind, b, r=None):
        s.kind, s.b, s.r = kind, b, r
        s.load = True
        s.klds = None
        s.kdst = vKF
        s.kread = True
        s.vreg = None
        s.kres = s.vres = None


def rv_regs(r):
    if r < N_RV_A:
        base = A_RV + 16 * r
        return lambda v: ar(base + 4 * v)
    base = V_RV2 + 16 * (r - N_RV_A)
    return lambda v: vr(base + 4 * v)


def build_pass(p):
    vis = []
    kring = 0
    vring = 0

    def mk_r(r):
        nonlocal kring
        x = Visit("R", r, r)
        x.vreg = rv_regs(r)
        x.vres = ("rv", r)
        if r < NKL:
            x.klds = (RING + r) * 4096
            x.kres = ("kl", r)
        else:
            x.kdst = V_RK + 16 * (r - NKL)
            if p == 0:
                x.klds = (kring % RING) * 4096
                x.kres = ("kr", kring % RING)
                kring += 1
            else:
                x.kread = False
        x.load = (p == 0)
        return x

    def mk_s(b):
        nonlocal kring, vring
        x = Visit("S", b)
        x.klds = (kring % RING) * 4096
        x.kres = ("kr", kring % RING)
        kring += 1
        base = A_RING + 16 * (vring % RING)
        x.vreg = lambda v, base=base: ar(base + 4 * v)
        x.vres = ("vr", vring % RING)
        vring += 1
        return x

    if p == 0:
        for r in range(NR):
            vis.append(mk_r(r))
        for b in range(NR, NV):
            vis.append(mk_s(b))
    else:
        sb = list(range(NR, NV))
        if P["REVERSE"]:
            sb = sb[::-1]
        rl = list(range(NR))
        for k, b in enumerate(sb):
            vis.append(mk_s(b))
            if rl and k >= 1:
                vis.append(mk_r(rl.pop(0)))
        assert not rl
    last_use = {}
    for j, x in enumerate(vis):
        dep = -1
        for res in (x.kres, x.vres):
            if res is not None and res in last_use:
                dep = max(dep, last_use[res])
        x.dep = dep
        for res in (x.kres, x.vres):
            if res is not None:
                last_use[res] = j
    loaders = [j for j, x in enumerate(vis) if x.load]
    prev = -1
    for n, j in enumerate(loaders):
        lim = loaders[n - DMAX] if n >= DMAX else -1
        at = max(vis[j].dep, lim, prev)
        vis[j].issue_at = at
        prev = at
    return vis


def issue_loads(x, j):
    e(f"s_add_u32 {sT}, {sKV}, {x.b * 4096}")
    e(f"s_add_u32 m0, {sLW}, {x.klds}")
    for t in range(4):
        g.vm(f"buffer_load_dwordx4 v{vKOFF[t]}, {S_K}, {sT} offen offset:{1024*t} nt lds", ("K", j))
    for v in range(4):
        g.vm(f"buffer_load_dwordx4 {x.vreg(v)}, v{vVOFF}, {S_V}, {sT} offen offset:{256*v} nt", ("V", j))


def emit_visit(x, j, vis):
    g.comment(f"visit {j} {x.kind} b={x.b}")
    if x.kread:
        g.wait_vm(("K", j))
        for s in range(4):
            e(f"ds_read_b128 {vr(x.kdst+4*s)}, v{vDSK[s]} offset:{x.klds}")
    for s in range(4):
        if x.kread:
            e(f"s_waitcnt lgkmcnt({3-s})")
        c = "0" if s == 0 else vr(vS)
        e(f"v_mfma_f32_16x16x32_bf16 {vr(vS)}, {vr(x.kdst+4*s)}, {vr(vQF+4*s)}, {c}")
    for r in range(4):
        e(f"v_fma_f32 v{vT+r}, v{vS+r}, {sC}, v{vNEGM}")
    e(f"v_max3_f32 v{vX}, v{vT}, v{vT+1}, v{vT+2}")
    e(f"v_max_f32 v{vX}, v{vX}, v{vT+3}")
    e(f"v_cmp_lt_f32 vcc, {sTHR}, v{vX}")
    ls, lb = g.newlabel("RS"), g.newlabel("RB")
    e(f"s_cbranch_vccnz {ls}")
    stubs.append((ls, lb, g.snapshot()))
    g.label(lb)
    for r in range(4):
        e(f"v_exp_f32 v{vT+r}, v{vT+r}")
    for r in range(4):
        e(f"v_cvt_pk_bf16_f32 v{vPK+r}, v{vT+r}, v{vT+r}")
        e(f"v_add_f32 v{vL0 + (r & 1)}, v{vL0 + (r & 1)}, v{vT+r}")
    g.wait_vm(("V", j))

    def ands(v):
        for r in range(4):
            e(f"v_and_b32 v{vKF+4*v+r}, v{vPK+v}, v{vM[r]}")

    def pv(v):
        e(f"v_mfma_f32_16x16x32_bf16 {vr(vO)}, {x.vreg(v)}, {vr(vKF+4*v)}, {vr(vO)}")
    ands(0); ands(1); pv(0); ands(2); pv(1); ands(3); pv(2); pv(3)
    for k, y in enumerate(vis):
        if y.load and y.issue_at == j:
            issue_loads(y, k)


def emit_stubs():
    for ls, lb, snap in stubs:
        g.restore(snap)
        g.label(ls)
        e(f"v_max3_f32 v{vX}, v{vS}, v{vS+1}, v{vS+2}")
        e(f"v_max_f32 v{vX}, v{vX}, v{vS+3}")
        e(f"v_mul_f32 v{vX}, {sC}, v{vX}")
        e(f"v_mov_b32 v{vY}, v{vX}")
        e(f"v_permlane16_swap_b32 v{vX}, v{vY}")
        e(f"v_max_f32 v{vX}, v{vX}, v{vY}")
        e(f"v_mov_b32 v{vY}, v{vX}")
        e(f"v_permlane32_swap_b32 v{vX}, v{vY}")
        e(f"v_max_f32 v{vX}, v{vX}, v{vY}")
        e(f"v_max_f32 v{vX}, v{vX}, -v{vNEGM}")
        e(f"v_add_f32 v{vY}, v{vNEGM}, v{vX}")
        e(f"v_exp_f32 v{vY}, -v{vY}")
        e(f"v_sub_f32 v{vNEGM}, 0, v{vX}")
        for r in range(4):
            e(f"v_mul_f32 v{vO+r}, v{vO+r}, v{vY}")
        e(f"v_mul_f32 v{vL0}, v{vL0}, v{vY}")
        e(f"v_mul_f32 v{vL1}, v{vL1}, v{vY}")
        for r in range(4):
            e(f"v_fma_f32 v{vT+r}, v{vS+r}, {sC}, v{vNEGM}")
        e("s_nop 1")
        e(f"s_branch {lb}")
    stubs.clear()


def init_softmax():
    e(f"v_mov_b32 v{vNEGM}, {f32(3.0e38)}")
    e(f"v_mov_b32 v{vL0}, 0")
    e(f"v_mov_b32 v{vL1}, 0")
    for r in range(4):
        e(f"v_mov_b32 v{vO+r}, 0")


def lanes_gi(vg, vi):
    e(f"v_lshrrev_b32 v{vg}, 4, v{vLANE}")
    e(f"v_and_b32 v{vi}, 15, v{vLANE}")


def maxu_tree(regs, dst):
    regs = list(regs)
    first = True
    while regs:
        if first:
            if len(regs) >= 3:
                e(f"v_max3_u32 v{dst}, v{regs[0]}, v{regs[1]}, v{regs[2]}"); regs = regs[3:]
            else:
                e(f"v_max_u32 v{dst}, v{regs[0]}, v{regs[1]}"); regs = regs[2:]
            first = False
        elif len(regs) >= 2:
            e(f"v_max3_u32 v{dst}, v{dst}, v{regs[0]}, v{regs[1]}"); regs = regs[2:]
        else:
            e(f"v_max_u32 v{dst}, v{dst}, v{regs[0]}"); regs = regs[1:]


def poll(loadfn, regs, tmp):
    g.flush()
    lp, dn = g.newlabel("PL"), g.newlabel("PD")
    e(f"s_mov_b32 {sSPIN}, {P['SPIN']}")
    g.label(lp)
    loadfn()
    e("s_waitcnt vmcnt(0)")
    maxu_tree(regs, tmp)
    e(f"v_cmp_eq_u32 vcc, -1, v{tmp}")
    e(f"s_cbranch_vccz {dn}")
    e(f"s_sub_u32 {sSPIN}, {sSPIN}, 1")
    e(f"s_cmp_lg_u32 {sSPIN}, 0")
    e(f"s_cbranch_scc1 {lp}")
    g.label(dn)
    g.vmq = []


def row_allreduce(regs, op):
    for sh in (8, 4, 2, 1):
        for r in regs:
            e(f"{op}_dpp v{r}, v{r}, v{r} row_ror:{sh} row_mask:0xf bank_mask:0xf")


def cross_rows(regs, tmps, op):
    for sw in ("v_permlane16_swap_b32", "v_permlane32_swap_b32"):
        for r, t in zip(regs, tmps):
            e(f"v_mov_b32 v{t}, v{r}")
        for r, t in zip(regs, tmps):
            e(f"{sw} v{r}, v{t}")
        for r, t in zip(regs, tmps):
            e(f"{op} v{r}, v{r}, v{t}")


def wave_is(w, lab, eq=True):
    e(f"s_cmp_eq_u32 s3, {w}")
    e(f"s_cbranch_scc0 {lab}" if eq else f"s_cbranch_scc1 {lab}")


def layernorm_to_Y(natural):
    D, X = vQF, vKF
    for k in range(8):
        e(f"v_lshlrev_b32 v{X+2*k}, 16, v{D+k}")
        e(f"v_and_b32 v{X+2*k+1}, 0xffff0000, v{D+k}")
    s1a, s1b, s2a, s2b = vC0, vC0 + 1, vC0 + 2, vC0 + 3
    e(f"v_add_f32 v{s1a}, v{X}, v{X+1}")
    e(f"v_add_f32 v{s1b}, v{X+2}, v{X+3}")
    e(f"v_mul_f32 v{s2a}, v{X}, v{X}")
    e(f"v_mul_f32 v{s2b}, v{X+1}, v{X+1}")
    for k in range(4, 16):
        a = s1a if k % 2 == 0 else s1b
        e(f"v_add_f32 v{a}, v{a}, v{X+k}")
    for k in range(2, 16):
        a = s2a if k % 2 == 0 else s2b
        e(f"v_fma_f32 v{a}, v{X+k}, v{X+k}, v{a}")
    e(f"v_add_f32 v{s1a}, v{s1a}, v{s1b}")
    e(f"v_add_f32 v{s2a}, v{s2a}, v{s2b}")
    row_allreduce([s1a, s2a], "v_add_f32")
    cross_rows([s1a, s2a], [s1b, s2b], "v_add_f32")
    e(f"v_mul_f32 v{s1a}, {f32(1.0/576)}, v{s1a}")
    e(f"v_mul_f32 v{s2a}, {f32(1.0/576)}, v{s2a}")
    e(f"v_fma_f32 v{s2a}, -v{s1a}, v{s1a}, v{s2a}")
    e(f"v_max_f32 v{s2a}, 0, v{s2a}")
    e(f"v_cvt_pk_bf16_f32 v{s1b}, v{s1a}, v{s2a}")
    e(f"v_lshlrev_b32 v{s1a}, 16, v{s1b}")
    e(f"v_and_b32 v{s2a}, 0xffff0000, v{s1b}")
    e(f"v_add_f32 v{s2a}, {f32(1e-5)}, v{s2a}")
    e(f"v_cvt_pk_bf16_f32 v{s2a}, v{s2a}, v{s2a}")
    e(f"v_and_b32 v{s2a}, 0xffff0000, v{s2a}")
    e(f"v_sqrt_f32 v{s2a}, v{s2a}")
    e(f"v_cvt_pk_bf16_f32 v{s2a}, v{s2a}, v{s2a}")
    e(f"v_and_b32 v{s2a}, 0xffff0000, v{s2a}")
    e(f"v_rcp_f32 v{s2a}, v{s2a}")
    ad = vC0 + 4
    if natural:
        e(f"v_lshlrev_b32 v{ad}, 5, v{vLANE}")
        e(f"v_add_u32 v{ad}, {SCR_Y}, v{ad}")
    else:
        t = vC0 + 5
        e(f"v_lshrrev_b32 v{ad}, 2, v{vLANE}")
        e(f"v_lshlrev_b32 v{ad}, 7, v{ad}")
        e(f"v_and_b32 v{t}, 3, v{vLANE}")
        e(f"v_lshl_add_u32 v{ad}, v{t}, 3, v{ad}")
        e(f"v_add_u32 v{ad}, {SCR_Y}, v{ad}")
    for k in range(16):
        e(f"v_sub_f32 v{X+k}, v{X+k}, v{s1a}")
    for k in range(16):
        e(f"v_mul_f32 v{X+k}, v{X+k}, v{s2a}")
    for k in range(16):
        e(f"v_cvt_pk_bf16_f32 v{X+k}, v{X+k}, v{X+k}")

    def off(k):
        kk = k % 8
        if natural:
            o = kk * 4
        else:
            d, hi = kk // 2, kk % 2
            b, r = d // 2, 2 * (d % 2) + hi
            o = 4 * b + 32 * r
        return o + (2048 if k >= 8 else 0)
    for k in range(8):
        e(f"ds_write_b32 v{ad}, v{X+k} offset:{off(k)}")
    e("s_mov_b64 exec, 0xff")
    for k in range(8, 16):
        e(f"ds_write_b32 v{ad}, v{X+k} offset:{off(k)}")
    e("s_mov_b64 exec, -1")


def gather_x(srd, soff, sc1, do_poll):
    ad = 2
    e(f"v_lshlrev_b32 v{ad}, 4, v{vLANE}")
    for k in range(4, 8):
        e(f"v_mov_b32 v{vQF+k}, 0")

    def ld():
        e(f"buffer_load_dwordx4 {vr(vQF)}, v{ad}, {srd}, {soff} offen{sc1}")
        e("s_mov_b64 exec, 0xff")
        e(f"buffer_load_dwordx4 {vr(vQF+4)}, v{ad}, {srd}, {soff} offen offset:1024{sc1}")
        e("s_mov_b64 exec, -1")
    if do_poll:
        poll(ld, range(vQF, vQF + 8), vX)
    else:
        ld()
        g.vmq += [("x", 0), ("x", 0)]


def gemv18_loads(which):
    vo, t = 1, 2
    rowb = 9216 if which == "ffn" else 8192
    e(f"v_lshrrev_b32 v{vo}, 4, v{vLANE}")
    e(f"v_lshlrev_b32 v{vo}, 1, v{vo}")
    e(f"v_bfe_u32 v{t}, v{vLANE}, 3, 1")
    e(f"v_add_u32 v{vo}, v{vo}, v{t}")
    e(f"v_mul_u32_u24 v{vo}, {rowb}, v{vo}")
    e(f"v_and_b32 v{t}, {3 if which == 'ffn' else 7}, v{vLANE}")
    e(f"v_lshl_add_u32 v{vo}, v{t}, 4, v{vo}")
    e(f"s_mul_i32 {sA}, s3, {144 * rowb}")
    if which == "ffn":
        e(f"s_lshl_b32 {sB}, {sF}, 6")
    else:
        e(f"s_lshl_b32 {sB}, {sHK}, 9")
        e(f"s_sub_u32 {sD}, {sSP}, 12")
        e(f"s_lshl_b32 {sD}, {sD}, 7")
        e(f"s_add_u32 {sB}, {sB}, {sD}")
    e(f"s_add_u32 {sA}, {sA}, {sB}")
    if which == "ffn":
        for srd, m in ((S_WG, M_MAT0), (S_WU, M_MAT1)):
            e(f"s_mov_b64 exec, {m}")
            for tt in range(18):
                e(f"s_add_u32 {sB}, {sA}, {8 * tt * rowb}")
                g.vm(f"buffer_load_dwordx4 {ar(4*tt)}, v{vo}, {srd}, {sB} offen nt", ("w", 0))
        e("s_mov_b64 exec, -1")
    else:
        for tt in range(18):
            e(f"s_add_u32 {sB}, {sA}, {8 * tt * rowb}")
            g.vm(f"buffer_load_dwordx4 {ar(4*tt)}, v{vo}, {S_WQ}, {sB} offen nt", ("w", 0))


def gemv18_compute(first_barrier=True, wait_w=True):
    ad, t = vC0, vC0 + 1
    e(f"v_lshrrev_b32 v{ad}, 4, v{vLANE}")
    e(f"v_lshlrev_b32 v{ad}, 1, v{ad}")
    e(f"v_bfe_u32 v{t}, v{vLANE}, 3, 1")
    e(f"v_add_u32 v{ad}, v{ad}, v{t}")
    e(f"s_mul_i32 {sA}, s3, 144")
    e(f"v_add_u32 v{ad}, {sA}, v{ad}")
    e(f"v_lshlrev_b32 v{ad}, 2, v{ad}")
    e(f"v_add_u32 v{ad}, {SCR_Y}, v{ad}")
    wa = vC0 + 2
    e(f"v_lshrrev_b32 v{wa}, 5, v{vLANE}")
    e(f"v_lshlrev_b32 v{wa}, 8, v{wa}")
    e(f"v_bfe_u32 v{t}, v{vLANE}, 4, 1")
    e(f"v_lshl_add_u32 v{wa}, v{t}, 7, v{wa}")
    e(f"v_and_b32 v{t}, 7, v{vLANE}")
    e(f"v_lshl_add_u32 v{wa}, v{t}, 2, v{wa}")
    e(f"s_lshl_b32 {sA}, s3, 9")
    e(f"s_add_u32 {sA}, {sA}, {SCR_RED}")
    e(f"v_add_u32 v{wa}, {sA}, v{wa}")
    if first_barrier:
        e("s_waitcnt lgkmcnt(0)")
        e("s_barrier")
    YV = vKF
    for k in range(9):
        e(f"ds_read2_b32 {vr(YV+2*k, 2)}, v{ad} offset0:{16*k} offset1:{16*k+8}")
    if wait_w:
        g.wait_vm_all()
    for tt in range(18):
        if tt % 2 == 0:
            e(f"s_waitcnt lgkmcnt({8 - tt // 2})")
        B = vS if tt % 2 == 0 else vT
        for r in range(4):
            e(f"v_and_b32 v{B+r}, v{YV+tt}, v{vM[r]}")
        c = "0" if tt == 0 else vr(vO)
        e(f"v_mfma_f32_16x16x32_bf16 {vr(vO)}, {ar(4*tt)}, {vr(B)}, {c}")
    e(f"s_mov_b64 exec, {M_DIAG}")
    for r in range(4):
        e(f"ds_write_b32 v{wa}, v{vO+r} offset:{32*r}")
    e("s_mov_b64 exec, -1")
    e("s_waitcnt lgkmcnt(0)")
    e("s_barrier")


def red_sum8(ad, dst, between=None, nbetween=0):
    for k in range(4):
        e(f"ds_read2st64_b32 {vr(vKF+2*k, 2)}, v{ad} offset0:{2*k} offset1:{2*k+1}")
    if between:
        between()
    e(f"s_waitcnt lgkmcnt({nbetween})")
    for k in range(4):
        e(f"v_add_f32 v{vKF+2*k}, v{vKF+2*k}, v{vKF+2*k+1}")
    e(f"v_add_f32 v{vKF}, v{vKF}, v{vKF+2}")
    e(f"v_add_f32 v{vKF+4}, v{vKF+4}, v{vKF+6}")
    e(f"v_add_f32 v{dst}, v{vKF}, v{vKF+4}")


def publish_partials(base, stride, idx_s, acc, acc4):
    vo, t = vC0, vC0 + 1
    e(f"v_lshrrev_b32 v{vo}, 4, v{vLANE}")
    e(f"v_lshlrev_b32 v{vo}, 3, v{vo}")
    e(f"v_and_b32 v{t}, 7, v{vLANE}")
    e(f"v_add_u32 v{vo}, v{vo}, v{t}")
    e(f"v_mul_u32_u24 v{vo}, {stride}, v{vo}")
    e(f"s_mul_i32 {sA}, s3, {32 * stride}")
    e(f"s_lshl_b32 {sB}, {idx_s}, 4")
    e(f"s_add_u32 {sA}, {sA}, {sB}")
    e(f"s_add_u32 {sA}, {sA}, {base}")
    e(f"s_mov_b64 exec, {M_N8}")
    e(f"buffer_store_dwordx4 {vr(acc)}, v{vo}, {S_WS}, {sA} offen sc1")
    sk = g.newlabel("PP")
    wave_is(3, sk)
    e(f"s_add_u32 {sA}, {sA}, {32 * stride}")
    e("s_mov_b64 exec, 0x00ff00ff")
    e(f"buffer_store_dwordx4 {vr(acc4)}, v{vo}, {S_WS}, {sA} offen sc1")
    g.label(sk)
    e("s_mov_b64 exec, -1")


def chain(layer, vis2):
    base = layer * BLK
    last = (layer == 1)
    ts(3 + 6 * layer)
    vo, t = 1, 2
    e(f"v_lshrrev_b32 v{vo}, 4, v{vLANE}")
    e(f"v_mul_u32_u24 v{vo}, 36864, v{vo}")
    e(f"v_and_b32 v{t}, 15, v{vLANE}")
    e(f"v_lshl_add_u32 v{vo}, v{t}, 4, v{vo}")
    e(f"s_lshl_b32 {sA}, {sHK}, 8")
    e(f"s_lshr_b32 {sB}, {sSP}, 3")
    e(f"s_lshl_b32 {sB}, {sB}, 7")
    e(f"s_add_u32 {sA}, {sA}, {sB}")
    e(f"s_and_b32 {sB}, {sSP}, 7")
    e(f"s_add_u32 {sA}, {sA}, {sB}")
    e(f"s_mul_i32 {sA}, {sA}, 1152")
    e(f"s_lshl_b32 {sB}, s3, 8")
    e(f"s_add_u32 {sB}, {sB}, {sA}")
    for v in range(4):
        e(f"s_add_u32 {sD}, {sB}, {9216 * v}")
        g.vm(f"buffer_load_dwordx4 {vr(vQF+4*v)}, v{vo}, {S_WO}, {sD} offen nt", ("wo", 0))
    sk = g.newlabel("WO")
    wave_is(3, sk)
    for v in range(4):
        e(f"s_add_u32 {sD}, {sA}, {9216 * v + 1024}")
        e(f"buffer_load_dwordx4 {vr(vKF+4*v)}, v{vo}, {S_WO}, {sD} offen nt")
    g.label(sk)
    e(f"v_add_f32 v{vL0}, v{vL0}, v{vL1}")
    cross_rows([vL0], [vX], "v_add_f32")
    e(f"v_mov_b32 v{vL1}, v{vL0}")
    e(f"v_mov_b32 v{vL0}, v{vNEGM}")
    a16, a8 = vC0, vC0 + 1
    e(f"v_lshlrev_b32 v{a16}, 4, v{vLANE}")
    e(f"v_add_u32 v{a16}, {SCR_O}, v{a16}")
    e(f"v_lshlrev_b32 v{a8}, 3, v{vLANE}")
    e(f"v_add_u32 v{a8}, {SCR_ML}, v{a8}")
    e(f"s_lshl_b32 {sA}, s3, 10")
    e(f"v_add_u32 v{vX}, {sA}, v{a16}")
    e(f"s_lshl_b32 {sA}, s3, 9")
    e(f"v_add_u32 v{vY}, {sA}, v{a8}")
    e(f"ds_write_b128 v{vX}, {vr(vO)}")
    e(f"ds_write_b64 v{vY}, {vr(vL0, 2)}")
    if layer == 0:
        lp, dn = g.newlabel("CL"), g.newlabel("CD")
        g.wait_vm(("clr", 0))
        e(f"s_mov_b32 {sSPIN}, {P['SPIN']}")
        g.label(lp)
        e(f"v_readfirstlane_b32 {sA}, v{vCLR}")
        e(f"s_cmp_eq_u32 {sA}, 256")
        e(f"s_cbranch_scc1 {dn}")
        e(f"buffer_load_dword v{vCLR}, off, {S_DBG}, 0 offset:64 sc1")
        e("s_waitcnt vmcnt(0)")
        e(f"s_sub_u32 {sSPIN}, {sSPIN}, 1")
        e(f"s_cmp_lg_u32 {sSPIN}, 0")
        e(f"s_cbranch_scc1 {lp}")
        g.label(dn)
    e("s_waitcnt lgkmcnt(0)")
    e("s_barrier")
    skA = g.newlabel("CA")
    wave_is(0, skA)
    OW = [vO, vS, vT, vPK]
    ML = [vKF + 2 * w for w in range(4)]
    for w in range(4):
        e(f"ds_read_b64 {vr(ML[w], 2)}, v{a8} offset:{512*w}")
    for w in range(1, 4):
        e(f"ds_read_b128 {vr(OW[w])}, v{a16} offset:{1024*w}")
    e("s_waitcnt lgkmcnt(3)")
    nm = vL0
    e(f"v_min_f32 v{nm}, v{ML[0]}, v{ML[1]}")
    e(f"v_min3_f32 v{nm}, v{nm}, v{ML[2]}, v{ML[3]}")
    for w in range(4):
        e(f"v_sub_f32 v{ML[w]}, v{nm}, v{ML[w]}")
    for w in range(4):
        e(f"v_exp_f32 v{ML[w]}, v{ML[w]}")
    e(f"v_mul_f32 v{vL1}, v{ML[0]}, v{ML[0]+1}")
    for w in range(1, 4):
        e(f"v_fma_f32 v{vL1}, v{ML[w]}, v{ML[w]+1}, v{vL1}")
    for r in range(4):
        e(f"v_mul_f32 v{vO+r}, v{vO+r}, v{ML[0]}")
    e("s_waitcnt lgkmcnt(0)")
    for w in range(1, 4):
        for r in range(4):
            e(f"v_fma_f32 v{vO+r}, v{OW[w]+r}, v{ML[w]}, v{vO+r}")
    e(f"v_and_b32 v{a16}, 15, v{vLANE}")
    e(f"v_lshlrev_b32 v{a8}, 7, v{a16}")
    e(f"v_lshlrev_b32 v{a16}, 10, v{a16}")
    e(f"v_lshrrev_b32 v{vX}, 4, v{vLANE}")
    e(f"v_lshl_add_u32 v{a16}, v{vX}, 4, v{a16}")
    e(f"s_lshl_b32 {sA}, {sHK}, 14")
    e(f"s_lshl_b32 {sB}, {sSP}, 6")
    e(f"s_add_u32 {sA}, {sA}, {sB}")
    e(f"s_add_u32 {sA}, {sA}, {base + O_RAO}")
    e(f"buffer_store_dwordx4 {vr(vO)}, v{a16}, {S_WS}, {sA} offen sc1")
    e(f"s_lshl_b32 {sA}, {sHK}, 11")
    e(f"s_lshl_b32 {sB}, {sSP}, 3")
    e(f"s_add_u32 {sA}, {sA}, {sB}")
    e(f"s_add_u32 {sA}, {sA}, {base + O_RAML}")
    e("s_mov_b64 exec, 0xffff")
    e(f"buffer_store_dwordx2 {vr(vL0, 2)}, v{a8}, {S_WS}, {sA} offen sc1")
    e("s_mov_b64 exec, -1")
    g.label(skA)
    ts(4 + 6 * layer)
    ao, am = vC0, vC0 + 1
    e(f"v_and_b32 v{am}, 15, v{vLANE}")
    e(f"v_lshlrev_b32 v{ao}, 6, v{am}")
    e(f"v_lshlrev_b32 v{am}, 3, v{am}")
    e(f"v_lshrrev_b32 v{vX}, 4, v{vLANE}")
    e(f"v_lshl_add_u32 v{ao}, v{vX}, 4, v{ao}")
    e(f"s_lshl_b32 {sA}, {sHK}, 4")
    e(f"s_add_u32 {sA}, {sA}, {sSP}")
    e(f"s_lshl_b32 {sB}, {sA}, 7")
    e(f"s_add_u32 {sB}, {sB}, {base + O_RAML}")
    e(f"s_lshl_b32 {sA}, {sA}, 10")
    e(f"s_add_u32 {sA}, {sA}, {base + O_RAO}")

    def ldB():
        e(f"buffer_load_dwordx4 {vr(vO)}, v{ao}, {S_WS}, {sA} offen sc1")
        e(f"buffer_load_dwordx2 {vr(vL0, 2)}, v{am}, {S_WS}, {sB} offen sc1")
    poll(ldB, [vO, vO + 1, vO + 2, vO + 3, vL0, vL1], vX)
    e(f"v_mov_b32 v{vX}, v{vL0}")
    row_allreduce([vX], "v_min_f32")
    e(f"v_sub_f32 v{vX}, v{vX}, v{vL0}")
    e(f"v_exp_f32 v{vX}, v{vX}")
    e(f"v_mul_f32 v{vL1}, v{vL1}, v{vX}")
    for r in range(4):
        e(f"v_mul_f32 v{vO+r}, v{vO+r}, v{vX}")
    row_allreduce([vL1, vO, vO + 1, vO + 2, vO + 3], "v_add_f32")
    e(f"v_rcp_f32 v{vL1}, v{vL1}")
    for r in range(4):
        e(f"v_mul_f32 v{vO+r}, v{vO+r}, v{vL1}")
    for r in range(4):
        e(f"v_cvt_pk_bf16_f32 v{vPK+r}, v{vO+r}, v{vO+r}")
    acc4 = vC0 + 2
    skb = g.newlabel("WB")
    for v in range(4):
        B = vS if v % 2 == 0 else vT
        for r in range(4):
            e(f"v_and_b32 v{B+r}, v{vPK+v}, v{vM[r]}")
        c = "0" if v == 0 else vr(vO)
        e(f"v_mfma_f32_16x16x32_bf16 {vr(vO)}, {vr(vQF+4*v)}, {vr(B)}, {c}")
    wave_is(3, skb)
    for v in range(4):
        B = vS if v % 2 == 0 else vT
        for r in range(4):
            e(f"v_and_b32 v{B+r}, v{vPK+v}, v{vM[r]}")
        c = "0" if v == 0 else vr(acc4)
        e(f"v_mfma_f32_16x16x32_bf16 {vr(acc4)}, {vr(vKF+4*v)}, {vr(B)}, {c}")
    g.flush()
    g.label(skb)
    publish_partials(base + O_PB, 4096, "s2", vO, acc4)
    ts(5 + 6 * layer)

    L_FFN, L_RED, L_Q, L_G = [g.newlabel(x) for x in ("FFN", "RED", "QP", "GG")]
    L_END = "L_exit"
    e("s_cmp_lt_u32 s2, 144")
    e(f"s_cbranch_scc1 {L_FFN}")
    e("s_cmp_lt_u32 s2, 180")
    e(f"s_cbranch_scc1 {L_RED}")
    if not last:
        e("s_cmp_ge_u32 s2, 192")
        e(f"s_cbranch_scc1 {L_Q}")
    e(f"s_branch {L_END if last else L_G}")

    g.label(L_FFN)
    g.flush()
    g.vmq = [("st", 0)] * 2
    gemv18_loads("ffn")
    vo, t = 1, 2
    e(f"v_lshrrev_b32 v{vo}, 4, v{vLANE}")
    e(f"v_mul_u32_u24 v{vo}, {8 * 1152}, v{vo}")
    e(f"v_and_b32 v{t}, 15, v{vLANE}")
    e(f"v_lshl_add_u32 v{vo}, v{t}, 4, v{vo}")
    e(f"s_mul_i32 {sA}, {sF}, {32 * 1152}")
    e(f"s_lshl_b32 {sB}, s3, 8")
    e(f"s_add_u32 {sB}, {sB}, {sA}")
    for k in range(8):
        e(f"s_add_u32 {sD}, {sB}, {1152 * k}")
        e(f"s_add_u32 m0, {sLW}, {1024 * k}")
        g.vm(f"buffer_load_dwordx4 v{vo}, {S_WD}, {sD} offen nt lds", ("wd", 0))
    sk = g.newlabel("WD")
    wave_is(3, sk)
    for k in range(8):
        e(f"s_add_u32 {sD}, {sA}, {1152 * k + 1024}")
        e(f"s_add_u32 m0, {sLW}, {8192 + 1024 * k}")
        e(f"buffer_load_dwordx4 v{vo}, {S_WD}, {sD} offen nt lds")
    g.label(sk)
    sk = g.newlabel("FX")
    wave_is(0, sk)
    e(f"s_mov_b32 {sA}, {base + O_XB0}")
    gather_x(S_WS, sA, " sc1", True)
    layernorm_to_Y(False)
    g.flush()
    g.label(sk)
    ts(6 + 6 * layer)
    g.vmq = [("?", 0)]
    gemv18_compute()
    la = vC0 + 3
    e(f"v_lshlrev_b32 v{la}, 4, v{vLANE}")
    e(f"v_add_u32 v{la}, {sLW}, v{la}")
    ad, t = vC0, vC0 + 1
    e(f"v_bfe_u32 v{ad}, v{vLANE}, 3, 1")
    e(f"v_lshlrev_b32 v{ad}, 5, v{ad}")
    e(f"v_lshrrev_b32 v{t}, 4, v{vLANE}")
    e(f"v_lshl_add_u32 v{ad}, v{t}, 3, v{ad}")
    e(f"v_and_b32 v{t}, 7, v{vLANE}")
    e(f"v_add_u32 v{ad}, v{ad}, v{t}")
    e(f"v_lshlrev_b32 v{ad}, 2, v{ad}")
    e(f"v_add_u32 v{ad}, {SCR_RED}, v{ad}")

    def rd_wd():
        for k in range(8):
            e(f"ds_read_b128 {ar(4*k)}, v{la} offset:{1024*k}")
    red_sum8(ad, vX, rd_wd, 8)
    e(f"v_cvt_pk_bf16_f32 v{vX}, v{vX}, v{vX}")
    e(f"v_and_b32 v{vX}, 0xffff0000, v{vX}")
    e(f"v_mov_b32_dpp v{vY}, v{vX} row_ror:8 row_mask:0xf bank_mask:0xf")
    G, U = vS, vS + 1
    e(f"v_cndmask_b32 v{G}, v{vY}, v{vX}, {M_N8}")
    e(f"v_cndmask_b32 v{U}, v{vX}, v{vY}, {M_N8}")
    z, w = vS + 2, vS + 3
    e(f"v_mul_f32 v{z}, v{G}, v{G}")
    e(f"v_mov_b32 v{w}, {f32(0.7978845608028654)}")
    e(f"v_mul_f32 v{z}, {f32(0.7978845608028654 * 0.044715)}, v{z}")
    e(f"v_add_f32 v{z}, v{z}, v{w}")
    e(f"v_mul_f32 v{z}, v{z}, v{G}")
    e(f"v_mul_f32 v{z}, {f32(-2.0 * 1.4426950408889634)}, v{z}")
    e(f"v_exp_f32 v{z}, v{z}")
    e(f"v_add_f32 v{z}, 1.0, v{z}")
    e(f"v_rcp_f32 v{z}, v{z}")
    e(f"v_mul_f32 v{z}, v{z}, v{G}")
    e(f"v_cvt_pk_bf16_f32 v{z}, v{z}, v{z}")
    e(f"v_and_b32 v{z}, 0xffff0000, v{z}")
    e(f"v_mul_f32 v{z}, v{z}, v{U}")
    e(f"v_cvt_pk_bf16_f32 v{vPK}, v{z}, v{z}")
    e("s_waitcnt lgkmcnt(0)")
    acc4 = vC0 + 4
    for blk in range(2):
        skb = g.newlabel("DB")
        if blk == 1:
            wave_is(3, skb)
            for k in range(8):
                e(f"ds_read_b128 {ar(32+4*k)}, v{la} offset:{8192+1024*k}")
            e("s_waitcnt lgkmcnt(0)")
        acc = vO if blk == 0 else acc4
        for k in range(8):
            B = vKF + 4 * (k % 4)
            for r in range(4):
                e(f"v_and_b32_dpp v{B+r}, v{vPK}, v{vM[r]} row_newbcast:{k} row_mask:0xf bank_mask:0xf")
            c = "0" if k == 0 else vr(acc)
            e(f"v_mfma_f32_16x16x32_bf16 {vr(acc)}, {ar(32*blk+4*k)}, {vr(B)}, {c}")
        if blk == 1:
            g.flush()
            g.label(skb)
    publish_partials(base + O_PD, 2304, sF, vO, acc4)
    ts(7 + 6 * layer)
    e(f"s_branch {L_END if last else L_G}")

    g.label(L_RED)
    g.flush()
    xs = vXS
    for stage in range(2):
        ad = vC0
        e(f"v_lshlrev_b32 v{ad}, 4, v{vLANE}")
        stride = 4096 if stage == 0 else 2304
        e(f"s_mul_i32 {sA}, {sRHO}, {stride}")
        e(f"s_add_u32 {sA}, {sA}, {base + (O_PB if stage == 0 else O_PD)}")
        nl = 4 if stage == 0 else 3
        if stage == 1:
            for r in range(4):
                e(f"v_mov_b32 v{vKF+8+r}, 0")

        def ldR():
            for k in range(nl):
                if stage == 1 and k == 2:
                    e("s_mov_b64 exec, 0xffff")
                e(f"buffer_load_dwordx4 {vr(vKF+4*k)}, v{ad}, {S_WS}, {sA} offen offset:{1024*k} sc1")
            if stage == 1:
                e("s_mov_b64 exec, -1")
        poll(ldR, range(vKF, vKF + 4 * nl), vX)
        for r in range(4):
            for k in range(1, nl):
                e(f"v_add_f32 v{vKF+r}, v{vKF+r}, v{vKF+4*k+r}")
        R4 = [vKF + r for r in range(4)]
        row_allreduce(R4, "v_add_f32")
        cross_rows(R4, [vKF + 4 + r for r in range(4)], "v_add_f32")
        e(f"v_cvt_pk_bf16_f32 v{vS}, v{vKF}, v{vKF+1}")
        e(f"v_cvt_pk_bf16_f32 v{vS+1}, v{vKF+2}, v{vKF+3}")
        for r in range(4):
            if r % 2 == 0:
                e(f"v_lshlrev_b32 v{vT+r}, 16, v{vS+r//2}")
            else:
                e(f"v_and_b32 v{vT+r}, 0xffff0000, v{vS+r//2}")
        for r in range(4):
            e(f"v_add_f32 v{vT+r}, v{vT+r}, v{xs+r}")
        e(f"v_cvt_pk_bf16_f32 v{vS}, v{vT}, v{vT+1}")
        e(f"v_cvt_pk_bf16_f32 v{vS+1}, v{vT+2}, v{vT+3}")
        for r in range(4):
            if r % 2 == 0:
                e(f"v_lshlrev_b32 v{xs+r}, 16, v{vS+r//2}")
            else:
                e(f"v_and_b32 v{xs+r}, 0xffff0000, v{vS+r//2}")
        e("s_mov_b64 exec, 1")
        if last and stage == 1:
            e(f"s_lshr_b32 {sA}, {sRHO}, 3")
            e(f"s_lshl_b32 {sA}, {sA}, 6")
            e(f"s_and_b32 {sB}, {sRHO}, 7")
            e(f"s_lshl_b32 {sB}, {sB}, 1")
            e(f"s_add_u32 {sA}, {sA}, {sB}")
            e(f"v_mov_b32 v{ad}, 0")
            for r in range(4):
                e(f"v_lshrrev_b32 v{vT+r}, 16, v{xs+r}")
            for r in range(4):
                e(f"buffer_store_short v{vT+r}, v{ad}, {S_OUT}, {sA} offen offset:{16*r}")
        else:
            e(f"s_lshl_b32 {sA}, {sRHO}, 3")
            e(f"s_add_u32 {sA}, {sA}, {base + (O_XB0 if stage == 0 else O_XB1)}")
            e(f"v_mov_b32 v{ad}, 0")
            e(f"buffer_store_dwordx2 {vr(vS, 2)}, v{ad}, {S_WS}, {sA} offen sc1")
        e("s_mov_b64 exec, -1")
        ts(6 + stage + 6 * layer)
    e(f"s_branch {L_END if last else L_G}")

    if last:
        return
    g.label(L_Q)
    g.flush()
    g.vmq = []
    gemv18_loads("q")
    q_project(lambda: (e(f"s_mov_b32 {sA}, {base + O_XB1}"), gather_x(S_WS, sA, " sc1", True)), False,
              (layer + 1) * BLK + O_QB)
    ts(7 + 6 * layer)
    g.label(L_G)
    g.flush()
    g.vmq = []
    prologue_and_q(vis2, lambda: load_q((layer + 1) * BLK + O_QB, True))
    ts(8 + 6 * layer)


def prologue(vis):
    for k, y in enumerate(vis):
        if y.load and y.issue_at == -1:
            issue_loads(y, k)


def prologue_and_q(vis, getq, pro_done=False):
    ad = vC0 + 2
    w0, j = g.newlabel("W0"), g.newlabel("WJ")
    e("s_cmp_eq_u32 s3, 0")
    e(f"s_cbranch_scc1 {w0}")
    if not pro_done:
        prologue(vis)
    e(f"s_branch {j}")
    g.label(w0)
    g.flush()
    g.vmq = []
    getq()
    e(f"v_lshlrev_b32 v{ad}, 4, v{vLANE}")
    e(f"v_add_u32 v{ad}, {SCR_Q}, v{ad}")
    for s_ in range(4):
        e(f"ds_write_b128 v{ad}, {vr(vQF+4*s_)} offset:{1024*s_}")
    g.vmq = []
    prologue(vis)
    keep = list(g.vmq)
    e("s_waitcnt lgkmcnt(0)")
    g.label(j)
    g.flush()
    g.vmq = keep
    e("s_barrier")
    e(f"v_lshlrev_b32 v{ad}, 4, v{vLANE}")
    e(f"v_add_u32 v{ad}, {SCR_Q}, v{ad}")
    for s_ in range(4):
        e(f"ds_read_b128 {vr(vQF+4*s_)}, v{ad} offset:{1024*s_}")
    e("s_waitcnt lgkmcnt(0)")


def q_project(gather, startup, qbase):
    if not startup:
        sk = g.newlabel("QX")
        wave_is(0, sk)
        gather()
        layernorm_to_Y(False)
        g.flush()
        g.label(sk)
        g.vmq = [("?", 0)]
        gemv18_compute()
    else:
        gemv18_compute(first_barrier=False, wait_w=False)
    sk = g.newlabel("QS")
    wave_is(0, sk)
    ad = vC0
    e(f"v_lshlrev_b32 v{ad}, 2, v{vLANE}")
    e(f"v_add_u32 v{ad}, {SCR_RED}, v{ad}")
    red_sum8(ad, vX)
    e(f"v_mov_b32_dpp v{vY}, v{vX} quad_perm:[1,0,3,2] row_mask:0xf bank_mask:0xf")
    e(f"v_cvt_pk_bf16_f32 v{vX}, v{vX}, v{vY}")
    e(f"v_lshlrev_b32 v{ad}, 1, v{vLANE}")
    e(f"s_lshl_b32 {sA}, {sHK}, 9")
    e(f"s_sub_u32 {sB}, {sSP}, 12")
    e(f"s_lshl_b32 {sB}, {sB}, 7")
    e(f"s_add_u32 {sA}, {sA}, {sB}")
    e(f"s_add_u32 {sA}, {sA}, {qbase}")
    e(f"s_mov_b64 exec, {M_EVEN}")
    e(f"buffer_store_dword v{vX}, v{ad}, {S_WS}, {sA} offen sc1")
    e("s_mov_b64 exec, -1")
    if startup:
        e("s_waitcnt vmcnt(0)")
        e(f"s_lshl_b32 {sA}, {sHK}, 2")
        e(f"v_mov_b32 v{ad}, {sA}")
        e(f"v_mov_b32 v{vX}, 1")
        e("s_mov_b64 exec, 1")
        e(f"buffer_atomic_add v{vX}, v{ad}, {S_DBG}, 0 offen")
        e("s_mov_b64 exec, -1")
    g.flush()
    g.label(sk)


def load_q(qbase, do_poll):
    ad, t = vC0, vC0 + 1
    e(f"v_bfe_u32 v{ad}, v{vLANE}, 3, 1")
    e(f"v_lshlrev_b32 v{ad}, 8, v{ad}")
    e(f"v_lshrrev_b32 v{t}, 4, v{vLANE}")
    e(f"v_lshl_add_u32 v{ad}, v{t}, 4, v{ad}")
    e(f"s_lshl_b32 {sA}, {sHK}, 9")
    e(f"s_add_u32 {sA}, {sA}, {qbase}")

    def ld():
        for s in range(4):
            e(f"buffer_load_dwordx4 {vr(vQF+4*s)}, v{ad}, {S_WS}, {sA} offen offset:{64*s} sc1")
    if do_poll:
        poll(ld, range(vQF, vQF + 16), vX)
    else:
        ld()
        g.wait_vm_all()


def main():
    vis1, vis2 = build_pass(0), build_pass(1)
    hdr = []
    ref = open(os.path.join(os.path.dirname(__file__), "..", "cdna_kernels", NAME + ".s.ref")).read().split("\n")
    for ln in ref:
        if ln.startswith("; @launch"):
            hdr.append(f"; @launch grid=(256,1,1) block=(256,1,1) lds={LDS_BYTES}")
        elif ln.startswith(";"):
            hdr.append(ln)
        else:
            break
    g.raw("\n".join(hdr))
    g.raw('.amdgcn_target "amdgcn-amd-amdhsa--gfx950"')
    g.raw(".text")
    g.raw(f".globl {NAME}_kernel")
    g.raw(".p2align 8")
    g.raw(f".type {NAME}_kernel,@function")
    g.raw(f"{NAME}_kernel:")
    e("s_cmp_ge_u32 s2, 256")
    e("s_cbranch_scc1 L_exit")
    srds = [(4, 8, 0x10000000), (8, 16, 0x10000000), (12, 24, 576 * 8192), (16, 32, 4096 * 1152),
            (20, 48, 576 * 9216), (24, 56, 576 * 9216), (28, 64, 4608 * 1152), (32, 88, WS_SIZE),
            (36, 80, 256), (40, 0, 1152), (44, 72, 1152)]
    for s, off, size in srds:
        e(f"s_load_dwordx2 s[{s}:{s+1}], s[0:1], {off}")
    for s, off, size in srds:
        e(f"s_mov_b32 s{s+2}, {size}")
        e(f"s_mov_b32 s{s+3}, 0x00020000")
    ts0 = P["DEBUG_TS"]
    e("v_lshrrev_b32 v1, 6, v0")
    e("v_and_b32 v0, 63, v0")
    e("v_readfirstlane_b32 s3, v1")
    e(f"s_and_b32 {sHK}, s2, 7")
    e(f"s_lshl_b32 {sHK}, {sHK}, 1")
    e(f"s_bfe_u32 {sA}, s2, 0x10003")
    e(f"s_add_u32 {sHK}, {sHK}, {sA}")
    e(f"s_lshr_b32 {sSP}, s2, 4")
    e(f"s_lshl_b32 {sKV}, {sHK}, 24")
    e(f"s_lshl_b32 {sA}, {sSP}, 20")
    e(f"s_add_u32 {sKV}, {sKV}, {sA}")
    e(f"s_lshl_b32 {sA}, s3, 18")
    e(f"s_add_u32 {sKV}, {sKV}, {sA}")
    e(f"s_mul_i32 {sLW}, s3, {WAVE_LDS}")
    e(f"s_mov_b32 {sC}, {f32(128 ** -0.5 * 1.4426950408889634)}")
    e(f"s_mov_b32 {sTHR}, {f32(8.0)}")
    e(f"s_and_b32 {sF}, s2, 7")
    e(f"s_mul_i32 {sF}, {sF}, 18")
    e(f"s_lshr_b32 {sA}, s2, 3")
    e(f"s_add_u32 {sF}, {sF}, {sA}")
    e(f"s_sub_u32 {sRHO}, s2, 144")
    e(f"s_lshl_b32 {sRHO}, {sRHO}, 2")
    e(f"s_add_u32 {sRHO}, {sRHO}, s3")
    for m, val in ((62, 0x00FF00FF00FF00FF), (64, 0xFF00FF0000FF00FF), (66, 0x0F0F0F0F0F0F0F0F), (68, 0xF0F0F0F0F0F0F0F0), (74, 0x5555555555555555)):
        e(f"s_mov_b32 s{m}, 0x{val & 0xffffffff:08x}")
        e(f"s_mov_b32 s{m+1}, 0x{val >> 32:08x}")
    e("v_lshrrev_b32 v1, 4, v0")
    e("v_and_b32 v2, 15, v0")
    e("v_xor_b32 v3, v1, v2")
    for t in range(4):
        e(f"v_xor_b32 v{vX}, {4*t}, v3")
        e(f"v_lshlrev_b32 v{vX}, 4, v{vX}")
        e(f"v_lshl_add_u32 v{vKOFF[t]}, v1, 8, v{vX}")
        e(f"v_lshl_add_u32 v{vDSK[t]}, v2, 8, v{vX}")
        e(f"v_add_u32 v{vDSK[t]}, {sLW}, v{vDSK[t]}")
    e(f"v_lshlrev_b32 v{vVOFF}, 10, v1")
    e(f"v_lshl_add_u32 v{vVOFF}, v2, 4, v{vVOFF}")
    e("v_and_b32 v3, 1, v0")
    e("v_cmp_eq_u32 vcc, 1, v3")
    e(f"v_mov_b32 v{vX}, 0x0000ffff")
    e(f"v_mov_b32 v{vY}, 0xffff0000")
    e(f"v_cndmask_b32 v{vX}, v{vX}, v{vY}, vcc")
    e("v_bfe_u32 v3, v0, 1, 2")
    for r in range(4):
        e(f"v_cmp_eq_u32 vcc, {r}, v3")
        e(f"v_cndmask_b32 v{vM[r]}, 0, v{vX}, vcc")
    e("s_waitcnt lgkmcnt(0)")
    ts(0)
    L_NQ, L_ST = g.newlabel("NQ"), g.newlabel("ST")
    e("s_cmp_ge_u32 s2, 192")
    e(f"s_cbranch_scc0 {L_NQ}")
    sk = g.newlabel("X0")
    wave_is(0, sk)
    gather_x(S_X, "0", "", False)
    g.label(sk)
    gemv18_loads("q")
    g.label(L_NQ)
    g.vmq = []
    e(f"v_mov_b32 v{vS}, -1")
    for r in range(1, 4):
        e(f"v_mov_b32 v{vS+r}, -1")
    e(f"v_lshlrev_b32 v{vX}, 4, v0")
    e(f"s_mul_i32 {sA}, s2, 10240")
    e(f"s_lshl_b32 {sB}, s3, 10")
    e(f"s_add_u32 {sA}, {sA}, {sB}")
    e(f"buffer_store_dwordx4 {vr(vS)}, v{vX}, {S_WS}, {sA} offen sc1")
    e(f"s_add_u32 {sA}, {sA}, 4096")
    e(f"buffer_store_dwordx4 {vr(vS)}, v{vX}, {S_WS}, {sA} offen sc1")
    sk = g.newlabel("CLR")
    e("s_cmp_lt_u32 s3, 2")
    e(f"s_cbranch_scc0 {sk}")
    e(f"s_add_u32 {sA}, {sA}, 4096")
    e(f"buffer_store_dwordx4 {vr(vS)}, v{vX}, {S_WS}, {sA} offen sc1")
    g.label(sk)
    sk = g.newlabel("RX")
    e(f"s_cmp_lt_u32 {sRHO}, 144")
    e(f"s_cbranch_scc0 {sk}")
    e(f"s_lshr_b32 {sA}, {sRHO}, 3")
    e(f"s_lshl_b32 {sA}, {sA}, 6")
    e(f"s_and_b32 {sB}, {sRHO}, 7")
    e(f"s_lshl_b32 {sB}, {sB}, 1")
    e(f"s_add_u32 {sA}, {sA}, {sB}")
    e(f"v_mov_b32 v{vY}, 0")
    for r in range(4):
        e(f"buffer_load_ushort v{vXS+r}, v{vY}, {S_X}, {sA} offen offset:{16*r}")
    g.label(sk)
    sk, sk2 = g.newlabel("P0"), g.newlabel("P1")
    e("s_cmp_eq_u32 s3, 0")
    e(f"s_cbranch_scc1 {sk}")
    g.vmq = []
    prologue(vis1)
    npro = len(g.vmq)
    e(f"s_waitcnt vmcnt({npro})")
    e(f"s_branch {sk2}")
    g.label(sk)
    g.flush()
    e("s_waitcnt vmcnt(0)")
    e("s_cmp_ge_u32 s2, 192")
    e(f"s_cbranch_scc0 {sk2}")
    layernorm_to_Y(True)
    g.label(sk2)
    g.flush()
    e("s_waitcnt lgkmcnt(0)")
    e("s_barrier")
    sk = g.newlabel("CS")
    wave_is(0, sk)
    e(f"v_mov_b32 v{vX}, 64")
    e(f"v_mov_b32 v{vY}, 1")
    e("s_mov_b64 exec, 1")
    e(f"buffer_atomic_add v{vY}, v{vX}, {S_DBG}, 0 offen")
    e("s_mov_b64 exec, -1")
    g.label(sk)
    for r in range(4):
        e(f"v_lshlrev_b32 v{vXS+r}, 16, v{vXS+r}")
    e("s_cmp_ge_u32 s2, 192")
    e(f"s_cbranch_scc0 {L_ST}")
    q_project(None, True, QB0)
    g.label(L_ST)
    g.flush()

    def getq0():
        lp, dn = g.newlabel("QF"), g.newlabel("QD")
        e(f"s_mov_b32 {sSPIN}, {P['SPIN']}")
        e(f"s_lshl_b32 {sA}, {sHK}, 2")
        e(f"v_mov_b32 v{vX}, {sA}")
        g.label(lp)
        e(f"buffer_load_dword v{vY}, v{vX}, {S_DBG}, 0 offen sc1")
        e("s_waitcnt vmcnt(0)")
        e(f"v_cmp_ne_u32 vcc, 4, v{vY}")
        e(f"s_cbranch_vccz {dn}")
        e(f"s_sub_u32 {sSPIN}, {sSPIN}, 1")
        e(f"s_cmp_lg_u32 {sSPIN}, 0")
        e(f"s_cbranch_scc1 {lp}")
        g.label(dn)
        g.vmq = []
        load_q(QB0, False)
    prologue_and_q(vis1, getq0, pro_done=True)
    ts(1)
    init_softmax()
    for j, x in enumerate(vis1):
        emit_visit(x, j, vis1)
        if j == NR:
            ts(2)
        if j == 40:
            g.vm(f"buffer_load_dword v{vCLR}, off, {S_DBG}, 0 offset:64 sc1", ("clr", 0))
    assert not g.vmq or True
    chain(0, vis2)
    init_softmax()
    for j, x in enumerate(vis2):
        emit_visit(x, j, vis2)
    chain(1, None)
    g.label("L_exit")
    if P["DEBUG_TS"]:
        sk = g.newlabel("TS")
        e("s_cmp_ge_u32 s2, 256")
        e(f"s_cbranch_scc1 {sk}")
        e("s_memrealtime s[80:81]")
        e("s_waitcnt lgkmcnt(0)")
        e(f"s_mov_b32 s{TS0+15}, s80")
        e("s_lshl_b32 s55, s2, 2")
        e("s_add_u32 s55, s55, s3")
        e("s_lshl_b32 s55, s55, 7")
        e(f"s_add_u32 s55, s55, {WS_TS}")
        e("s_mov_b64 exec, 1")
        e("v_mov_b32 v1, 0")
        for k in range(16):
            e(f"v_mov_b32 v2, s{TS0+k}")
            e(f"buffer_store_dword v2, v1, {S_WS}, s55 offen offset:{4*k}")
            e("s_nop 0")
        g.label(sk)
    e("s_endpgm")
    emit_stubs()
    g.raw(".section .rodata,\"a\"")
    g.raw(".p2align 6")
    g.raw(f".amdhsa_kernel {NAME}_kernel")
    g.raw("  .amdhsa_next_free_vgpr 512")
    g.raw("  .amdhsa_next_free_sgpr 102")
    g.raw("  .amdhsa_accum_offset 256")
    g.raw("  .amdhsa_group_segment_fixed_size 0")
    g.raw("  .amdhsa_kernarg_size 96")
    g.raw("  .amdhsa_user_sgpr_count 2")
    g.raw("  .amdhsa_user_sgpr_kernarg_segment_ptr 1")
    g.raw("  .amdhsa_system_sgpr_workgroup_id_x 1")
    g.raw(".end_amdhsa_kernel")
    out = os.environ.get("OUT", os.path.join(os.path.dirname(__file__), "..", "cdna_kernels", NAME + ".s"))
    open(out, "w").write(g.text())
    print("instructions:", g.count, "bytes:", len(g.text()))


main()
```

```python
import sys, os, struct, json
sys.path.insert(0, os.path.dirname(__file__))
from asmlib import Asm

NAME = "interleave_layers__gqa_block_cached__glu_gated_geglu__decode"

P = dict(
    RING=5,
    DEBUG_TS=0,
    SPIN=200000,
    D=3,
    LREQ=6,
    NREP=32,
    DR=3,
    L2A=0, L2B=0,
    EXP=0,
)
for a in sys.argv[1:]:
    if "=" in a:
        k, v = a.split("=")
        assert k in P, k
        P[k] = int(v)
RING, D, LREQ, DR = P["RING"], P["D"], P["LREQ"], P["DR"]
NKL = 9 - RING
NR_L = 18 - RING
NR_H = NR_L - 4
NHEAVY = 13
R_TOT = 4 * (NHEAVY * NR_H + (16 - NHEAVY) * NR_L)
NS = (4096 - R_TOT) // 4
assert R_TOT + 4 * NS == 4096
APRE = 3
J0 = RING * ((APRE + RING - D + 1 + RING - 1) // RING)
while J0 < 2 * RING:
    J0 += RING
K0 = J0 + D
assert D <= RING and LREQ - D < RING and LREQ >= D + 2 and K0 - LREQ >= RING


def f32(x):
    return "0x%08x" % struct.unpack("<I", struct.pack("<f", x))[0]


WAVE_LDS = 9 * 4096
SCR = 4 * WAVE_LDS
SCR_O, SCR_ML, SCR_Y, SCR_RED = SCR, SCR + 4096, SCR + 6144, SCR + 8704
SCR_Q = SCR + 10752
SCR_R2 = SCR + 14848
LDS_BYTES = 163840
assert SCR_RED + 2048 <= SCR_Q and SCR_Q + 4096 <= SCR_R2 and SCR_R2 + 512 <= LDS_BYTES
LDS_WD = (RING + NKL - 2) * 4096

REPS = 2048
NREP = P["NREP"]
O_PB = 0x0
O_PD = 0x90000
O_RAO = 0xE4000
O_RAML = 0x124000
O_QB = 0x12C000
O_XB0 = 0x130000
O_XB1 = 0x140000
BLK = 0x150000
assert NREP * REPS <= 0x10000
CLEAR_BYTES = 2 * BLK
CLR_PER_WG = CLEAR_BYTES // 256
assert CLR_PER_WG == 10752
QB0 = 0x300000
O_CNT = 0x310000
WS_TS = 0x400000
WS_SIZE = 0x800000

(S_K, S_V, S_WQ, S_WO, S_WG, S_WU, S_WD, S_WS, S_DBG, S_X, S_OUT, S_CNT) = [f"s[{4*k+4}:{4*k+7}]" for k in range(12)]
NRK, NRV, NRC = "s6", "s10", "s50"
(sKVR, sKVS, sT, sC, sTHR, sHK, sSP, sLW, sA, sB, sD, sF, sSPIN, sCNT) = [f"s{52+k}" for k in range(14)]
M_N8, M_DIAG, M_MAT0, M_MAT1, M_EVEN = [f"s[{66+2*k}:{67+2*k}]" for k in range(5)]
sTK = [f"s{76+k}" for k in range(5)]
sROLE, sBASE, sLAYER, sTSB = "s81", "s82", "s83", "s84"
KV_BYTES = 0x10000000
ROLE_FFN, ROLE_Q, ROLE_RED, ROLE_NONE = 0, 1, 2, 3

vLANE = 0
vTS = 3
vKOFF = [4, 5, 6, 7]
vVOFF = 8
vDSK = [9, 10, 11, 12]
vM = [13, 14, 15, 16]
vNEGM, vL0, vL1 = 17, 18, 19
vO, vS, vT, vPK = 20, 24, 28, 32
vX, vY = 36, 37
vC0 = 38
vTK = [38, 39, 40, 41, 42]
vCLR = vTK[RING - 1]
vTKA = 43
vXS = 44
vKF, vQF = 48, 64

A_slots = [("a", 16 * k) for k in range(RING, 16)]
V_slots = [("v", 80 + 16 * k) for k in range(11)]
TOP6 = A_slots[-6:]
_rest = V_slots + A_slots[:-6]
HK, HV = {}, {}
for r in range(NR_H):
    if r < NKL - 2:
        HK[r] = ("l", RING + r)
    else:
        HK[r] = _rest.pop(0)
for r in range(NR_H):
    HV[r] = _rest.pop(0)
assert not _rest
HK[NR_H], HK[NR_H + 1] = ("l", RING + NKL - 2), ("l", RING + NKL - 1)
HK[NR_H + 2], HK[NR_H + 3] = TOP6[4], TOP6[5]
for k in range(4):
    HV[NR_H + k] = TOP6[k]
A_WGT = TOP6[0][1]
A_WD5 = A_WGT + 72


def vr(b, n=4):
    return f"v[{b}:{b+n-1}]"


def ar(b, n=4):
    return f"a[{b}:{b+n-1}]"


def hreg(home):
    kind, base = home
    assert kind in "va"
    return lambda k: f"{kind}[{base+4*k}:{base+4*k+3}]"


g = Asm()
e = g.e
stubs = []
TSN = [""] * 64
TS_LOOP0, TS_PER = 8, 27
_ts_start, _ts_loop = [], []


def ts(name, loop=False):
    if not P["DEBUG_TS"]:
        return
    lst = _ts_loop if loop else _ts_start
    if name not in lst:
        lst.append(name)
    k = lst.index(name)
    e("s_memrealtime s[0:1]")
    if loop:
        assert k < 18
        TSN[TS_LOOP0 + k] = "c0." + name
        TSN[TS_LOOP0 + TS_PER + k] = "c1." + name
        e(f"s_add_u32 m0, {sTSB}, {TS_LOOP0 + k}")
        e("s_waitcnt lgkmcnt(0)")
        e(f"v_writelane_b32 v{vTS}, s0, m0")
    else:
        if name == "end":
            k = 63
        assert k < TS_LOOP0 or k == 63
        TSN[k] = name
        e("s_waitcnt lgkmcnt(0)")
        e(f"v_writelane_b32 v{vTS}, s0, {k}")


def ring_v(slot):
    return hreg(("a", 16 * slot))


def issue_tile(soff, klds, vreg, tag):
    e(f"s_add_u32 m0, {sLW}, {klds}")
    nt = "" if (tag[0] == "S" and P["L2A"] <= tag[1] < P["L2B"]) else " nt"
    for t in range(4):
        g.vm(f"buffer_load_dwordx4 v{vKOFF[t]}, {S_K}, {soff} offen offset:{1024*t}{nt} lds", ("K", tag))
    for v in range(4):
        g.vm(f"buffer_load_dwordx4 {vreg(v)}, v{vVOFF}, {S_V}, {soff} offen offset:{(1024 if P['EXP'] & 2 else 256)*v}{nt}", ("V", tag))


def issue_S_static(i):
    slot = i % RING
    e(f"s_add_u32 {sTK[slot]}, {sSP}, {16 * i}")
    e(f"s_lshl_b32 {sT}, {sTK[slot]}, 12")
    e(f"s_add_u32 {sT}, {sT}, {sKVS}")
    issue_tile(sT, slot * 4096, ring_v(slot), ("S", i))


def request_ticket(j):
    r = vTK[j % RING]
    if P["EXP"] & 8:
        return
    e(f"v_mov_b32 v{r}, 1")
    g.vm(f"buffer_atomic_add v{r}, v{vTKA}, {S_CNT}, {sCNT} offen sc0", ("T", j + LREQ))


def issue_S_dyn(i):
    slot = i % RING
    r = vTK[(i - LREQ) % RING]
    g.wait_vm(("T", i))
    if P["EXP"] & 8:
        e(f"s_add_u32 {sTK[slot]}, {sTK[(slot - 1) % RING]}, 16")
    else:
        e(f"v_readfirstlane_b32 {sTK[slot]}, v{r}")
        e(f"s_add_u32 {sTK[slot]}, {sTK[slot]}, {16 * K0}")
    e(f"s_lshl_b32 {sT}, {sTK[slot]}, 12")
    e(f"s_add_u32 {sT}, {sT}, {sKVS}")
    e(f"s_cmp_lt_u32 {sTK[slot]}, {NS}")
    e(f"s_cselect_b32 {sT}, {sT}, 0")
    e(f"s_cselect_b32 {NRK}, {KV_BYTES}, 0")
    e(f"s_cselect_b32 {NRV}, {KV_BYTES}, 0")
    e(f"s_cselect_b32 {NRC}, {WS_SIZE}, 0")


def emit_visit(kind, idx, after=None):
    g.comment(f"visit {kind}{idx}")
    if kind == "S":
        slot = idx % RING
        khome, vreg = ("l", slot), ring_v(slot)
        g.wait_vm(("K", ("S", idx)))
    else:
        khome, vreg = HK[idx], hreg(HV[idx])
    kread = khome[0] == "l"
    kreg = hreg(("v", vKF)) if kread else hreg(khome)
    if kind == "S" and (P["EXP"] & 1) and idx >= 1:
        g.wait_vm(("V", ("S", idx)))
        if after:
            after()
        return
    if kread:
        for s in range(4):
            e(f"ds_read_b128 {vr(vKF+4*s)}, v{vDSK[s]} offset:{khome[1] * 4096}")
    for s in range(4):
        if kread:
            e(f"s_waitcnt lgkmcnt({3-s})")
        c = "0" if s == 0 else vr(vS)
        e(f"v_mfma_f32_16x16x32_bf16 {vr(vS)}, {kreg(s)}, {vr(vQF+4*s)}, {c}")
    for r in range(4):
        e(f"v_fma_f32 v{vT+r}, v{vS+r}, {sC}, v{vNEGM}")
    e(f"v_max3_f32 v{vX}, v{vT}, v{vT+1}, v{vT+2}")
    e(f"v_max_f32 v{vX}, v{vX}, v{vT+3}")
    e(f"v_cmp_lt_f32 vcc, {sTHR}, v{vX}")
    ls, lb = g.newlabel("RS"), g.newlabel("RB")
    e(f"s_cbranch_vccnz {ls}")
    stubs.append((ls, lb, g.snapshot()))
    g.label(lb)
    for r in range(4):
        e(f"v_exp_f32 v{vT+r}, v{vT+r}")
    for r in range(4):
        e(f"v_cvt_pk_bf16_f32 v{vPK+r}, v{vT+r}, v{vT+r}")
        e(f"v_add_f32 v{vL0 + (r & 1)}, v{vL0 + (r & 1)}, v{vT+r}")
    if kind == "S":
        g.wait_vm(("V", ("S", idx)))

    def ands(v):
        for r in range(4):
            e(f"v_and_b32 v{vKF+4*v+r}, v{vPK+v}, v{vM[r]}")

    def pv(v):
        e(f"v_mfma_f32_16x16x32_bf16 {vr(vO)}, {vreg(v)}, {vr(vKF+4*v)}, {vr(vO)}")
    ands(0); ands(1); pv(0); ands(2); pv(1); ands(3); pv(2); pv(3)
    if after:
        after()


def emit_stubs():
    for ls, lb, snap in stubs:
        g.restore(snap)
        g.label(ls)
        e(f"v_max3_f32 v{vX}, v{vS}, v{vS+1}, v{vS+2}")
        e(f"v_max_f32 v{vX}, v{vX}, v{vS+3}")
        e(f"v_mul_f32 v{vX}, {sC}, v{vX}")
        e(f"v_mov_b32 v{vY}, v{vX}")
        e(f"v_permlane16_swap_b32 v{vX}, v{vY}")
        e(f"v_max_f32 v{vX}, v{vX}, v{vY}")
        e(f"v_mov_b32 v{vY}, v{vX}")
        e(f"v_permlane32_swap_b32 v{vX}, v{vY}")
        e(f"v_max_f32 v{vX}, v{vX}, v{vY}")
        e(f"v_ceil_f32 v{vX}, v{vX}")
        e(f"v_max_f32 v{vX}, v{vX}, -v{vNEGM}")
        e(f"v_add_f32 v{vY}, v{vNEGM}, v{vX}")
        e(f"v_exp_f32 v{vY}, -v{vY}")
        e(f"v_sub_f32 v{vNEGM}, 0, v{vX}")
        for r in range(4):
            e(f"v_mul_f32 v{vO+r}, v{vO+r}, v{vY}")
        e(f"v_mul_f32 v{vL0}, v{vL0}, v{vY}")
        e(f"v_mul_f32 v{vL1}, v{vL1}, v{vY}")
        for r in range(4):
            e(f"v_fma_f32 v{vT+r}, v{vS+r}, {sC}, v{vNEGM}")
        e("s_nop 1")
        e(f"s_branch {lb}")
    stubs.clear()


def init_softmax():
    e(f"v_mov_b32 v{vNEGM}, {f32(3.0e38)}")
    e(f"v_mov_b32 v{vL0}, 0")
    e(f"v_mov_b32 v{vL1}, 0")
    for r in range(4):
        e(f"v_mov_b32 v{vO+r}, 0")


def restore_nr():
    e(f"s_mov_b32 {NRK}, {KV_BYTES}")
    e(f"s_mov_b32 {NRV}, {KV_BYTES}")
    e(f"s_mov_b32 {NRC}, {WS_SIZE}")


def s_prologue():
    restore_nr()
    for i in range(RING):
        issue_S_static(i)


def canonical_S():
    q = []
    for i in range(RING):
        q += [("K", ("S", i))] * 4 + [("V", ("S", i))] * 4
    return q


def emit_pass():
    g.comment("================ pass")
    g.vmq = canonical_S()
    init_softmax()
    e(f"v_cmp_eq_u32 vcc, 0, v{vLANE}")
    e(f"v_mov_b32 v{vTKA}, 0x40000000")
    e(f"v_cndmask_b32 v{vTKA}, v{vTKA}, 0, vcc")
    e(f"s_lshl_b32 {sCNT}, {sLAYER}, 4")
    e(f"s_add_u32 {sCNT}, {sCNT}, {sHK}")
    e(f"s_lshl_b32 {sCNT}, {sCNT}, 2")
    e(f"s_add_u32 {sCNT}, {sCNT}, s3")
    e(f"s_lshl_b32 {sCNT}, {sCNT}, 8")
    e(f"s_add_u32 {sCNT}, {sCNT}, {O_CNT}")

    def nxt_of(j):
        if j < APRE:
            return j + RING
        if j < APRE + RING - D:
            return None
        return j + D

    def after_S(j):
        def f():
            nxt = nxt_of(j)
            if nxt is not None and nxt >= K0:
                issue_S_dyn(nxt)
            if j + LREQ >= K0:
                if j + LREQ == K0:
                    clr_check()
                request_ticket(j)
            if nxt is not None:
                if nxt < K0:
                    issue_S_static(nxt)
                else:
                    issue_tile(sT, (nxt % RING) * 4096, ring_v(nxt % RING), ("S", nxt))
        return f

    order = [("S", k) for k in range(APRE)]
    rl = list(range(NR_H))
    per = (NR_H + 1) // 2
    for k in (APRE, APRE + 1):
        for _ in range(per):
            if rl:
                order.append(("R", rl.pop(0)))
        order.append(("S", k))
    order.append(("X", 0))
    for k in range(APRE + 2, J0):
        order.append(("S", k))
    for kind, idx in order:
        if kind == "X":
            sk = g.newlabel("XR")
            e(f"s_cmp_lt_u32 {sROLE}, 2")
            e(f"s_cbranch_scc1 {sk}")
            for r in range(NR_H, NR_L):
                emit_visit("R", r)
            g.flush()
            g.label(sk)
            continue
        emit_visit(kind, idx, after_S(idx) if kind == "S" else None)
        if kind == "S" and idx == K0 - LREQ - 2:
            g.vm(f"buffer_load_dword v{vCLR}, off, {S_DBG}, 0 offset:64 sc1", ("clr", 0))
    L_LOOP, L_END = g.newlabel("LOOP"), g.newlabel("PEND")
    g.flush()
    q0 = list(g.vmq)
    g.label(L_LOOP)
    for p in range(RING):
        j = J0 + p
        e(f"s_cmp_ge_u32 {sTK[p]}, {NS}")
        e(f"s_cbranch_scc1 {L_END}")
        if P["DEBUG_TS"] >= 2 and p == 0:
            for k in range(7):
                TSN[TS_LOOP0 + 18 + k] = f"c0.tk<{128*(k+1)}"
                TSN[TS_LOOP0 + TS_PER + 18 + k] = f"c1.tk<{128*(k+1)}"
            e("s_memrealtime s[0:1]")
            e(f"s_lshr_b32 {sA}, {sTK[0]}, 7")
            e(f"s_add_u32 {sA}, {sA}, {sTSB}")
            e(f"s_add_u32 m0, {sA}, {TS_LOOP0 + 18}")
            e("s_waitcnt lgkmcnt(0)")
            e(f"v_writelane_b32 v{vTS}, s0, m0")
        emit_visit("S", j, after_S(j))
    g.flush()
    e(f"s_branch {L_LOOP}")

    def shift(t):
        if t is None:
            return None
        if t[0] in ("K", "V"):
            return (t[0], (t[1][0], t[1][1] - RING))
        if t[0] == "T":
            return ("T", t[1] - RING)
        return t
    q1 = [shift(t) for t in g.vmq]
    assert q0 == q1, (q0, q1)
    g.label(L_END)
    g.flush()
    g.wait_vm_all()


def clr_check():
    lp, dn = g.newlabel("CL"), g.newlabel("CD")
    g.wait_vm(("clr", 0))
    e(f"s_mov_b32 {sSPIN}, {P['SPIN']}")
    g.label(lp)
    e(f"v_readfirstlane_b32 {sA}, v{vCLR}")
    e(f"s_cmp_eq_u32 {sA}, 256")
    e(f"s_cbranch_scc1 {dn}")
    e(f"buffer_load_dword v{vCLR}, off, {S_DBG}, 0 offset:64 sc1")
    e("s_waitcnt vmcnt(0)")
    e(f"s_sub_u32 {sSPIN}, {sSPIN}, 1")
    e(f"s_cmp_lg_u32 {sSPIN}, 0")
    e(f"s_cbranch_scc1 {lp}")
    g.label(dn)


def maxu_tree(regs, dst):
    regs = list(regs)
    first = True
    while regs:
        if first:
            if len(regs) >= 3:
                e(f"v_max3_u32 v{dst}, v{regs[0]}, v{regs[1]}, v{regs[2]}"); regs = regs[3:]
            else:
                e(f"v_max_u32 v{dst}, v{regs[0]}, v{regs[1]}"); regs = regs[2:]
            first = False
        elif len(regs) >= 2:
            e(f"v_max3_u32 v{dst}, v{dst}, v{regs[0]}, v{regs[1]}"); regs = regs[2:]
        else:
            e(f"v_max_u32 v{dst}, v{dst}, v{regs[0]}"); regs = regs[1:]


def poll(loadfn, regs, tmp):
    g.flush()
    lp, dn = g.newlabel("PL"), g.newlabel("PD")
    e(f"s_mov_b32 {sSPIN}, {P['SPIN']}")
    g.label(lp)
    loadfn()
    e("s_waitcnt vmcnt(0)")
    maxu_tree(regs, tmp)
    e(f"v_cmp_eq_u32 vcc, -1, v{tmp}")
    e(f"s_cbranch_vccz {dn}")
    e(f"s_sub_u32 {sSPIN}, {sSPIN}, 1")
    e(f"s_cmp_lg_u32 {sSPIN}, 0")
    e(f"s_cbranch_scc1 {lp}")
    g.label(dn)
    g.vmq = []


def row_allreduce(regs, op, shifts=(8, 4, 2, 1)):
    for sh in shifts:
        for r in regs:
            e(f"{op}_dpp v{r}, v{r}, v{r} row_ror:{sh} row_mask:0xf bank_mask:0xf")


def cross_rows(regs, tmps, op):
    for sw in ("v_permlane16_swap_b32", "v_permlane32_swap_b32"):
        for r, t in zip(regs, tmps):
            e(f"v_mov_b32 v{t}, v{r}")
        for r, t in zip(regs, tmps):
            e(f"{sw} v{r}, v{t}")
        for r, t in zip(regs, tmps):
            e(f"{op} v{r}, v{r}, v{t}")


def wave_is(w, lab):
    e(f"s_cmp_eq_u32 s3, {w}")
    e(f"s_cbranch_scc0 {lab}")


def add_base(sreg, const):
    e(f"s_add_u32 {sreg}, {sreg}, {const}")
    e(f"s_add_u32 {sreg}, {sreg}, {sBASE}")


def layernorm_to_Y(natural):
    Dd, X = vQF, vKF
    for k in range(8):
        e(f"v_lshlrev_b32 v{X+2*k}, 16, v{Dd+k}")
        e(f"v_and_b32 v{X+2*k+1}, 0xffff0000, v{Dd+k}")
    s1a, s1b, s2a, s2b = vC0, vC0 + 1, vC0 + 2, vC0 + 3
    e(f"v_add_f32 v{s1a}, v{X}, v{X+1}")
    e(f"v_add_f32 v{s1b}, v{X+2}, v{X+3}")
    e(f"v_mul_f32 v{s2a}, v{X}, v{X}")
    e(f"v_mul_f32 v{s2b}, v{X+1}, v{X+1}")
    for k in range(4, 16):
        a = s1a if k % 2 == 0 else s1b
        e(f"v_add_f32 v{a}, v{a}, v{X+k}")
    for k in range(2, 16):
        a = s2a if k % 2 == 0 else s2b
        e(f"v_fma_f32 v{a}, v{X+k}, v{X+k}, v{a}")
    e(f"v_add_f32 v{s1a}, v{s1a}, v{s1b}")
    e(f"v_add_f32 v{s2a}, v{s2a}, v{s2b}")
    row_allreduce([s1a, s2a], "v_add_f32")
    cross_rows([s1a, s2a], [s1b, s2b], "v_add_f32")
    e(f"v_mul_f32 v{s1a}, {f32(1.0/576)}, v{s1a}")
    e(f"v_mul_f32 v{s2a}, {f32(1.0/576)}, v{s2a}")
    e(f"v_fma_f32 v{s2a}, -v{s1a}, v{s1a}, v{s2a}")
    e(f"v_max_f32 v{s2a}, 0, v{s2a}")
    e(f"v_cvt_pk_bf16_f32 v{s1b}, v{s1a}, v{s2a}")
    e(f"v_lshlrev_b32 v{s1a}, 16, v{s1b}")
    e(f"v_and_b32 v{s2a}, 0xffff0000, v{s1b}")
    e(f"v_add_f32 v{s2a}, {f32(1e-5)}, v{s2a}")
    e(f"v_cvt_pk_bf16_f32 v{s2a}, v{s2a}, v{s2a}")
    e(f"v_and_b32 v{s2a}, 0xffff0000, v{s2a}")
    e(f"v_sqrt_f32 v{s2a}, v{s2a}")
    e(f"v_cvt_pk_bf16_f32 v{s2a}, v{s2a}, v{s2a}")
    e(f"v_and_b32 v{s2a}, 0xffff0000, v{s2a}")
    e(f"v_rcp_f32 v{s2a}, v{s2a}")
    ad = vC0 + 4
    if natural:
        e(f"v_lshlrev_b32 v{ad}, 5, v{vLANE}")
        e(f"v_add_u32 v{ad}, {SCR_Y}, v{ad}")
    else:
        t = vC0 + 5
        e(f"v_lshrrev_b32 v{ad}, 2, v{vLANE}")
        e(f"v_lshlrev_b32 v{ad}, 7, v{ad}")
        e(f"v_and_b32 v{t}, 3, v{vLANE}")
        e(f"v_lshl_add_u32 v{ad}, v{t}, 3, v{ad}")
        e(f"v_add_u32 v{ad}, {SCR_Y}, v{ad}")
    for k in range(16):
        e(f"v_sub_f32 v{X+k}, v{X+k}, v{s1a}")
    for k in range(16):
        e(f"v_mul_f32 v{X+k}, v{X+k}, v{s2a}")
    for k in range(16):
        e(f"v_cvt_pk_bf16_f32 v{X+k}, v{X+k}, v{X+k}")

    def off(k):
        kk = k % 8
        if natural:
            o = kk * 4
        else:
            d, hi = kk // 2, kk % 2
            b, r = d // 2, 2 * (d % 2) + hi
            o = 4 * b + 32 * r
        return o + (2048 if k >= 8 else 0)
    for k in range(8):
        e(f"ds_write_b32 v{ad}, v{X+k} offset:{off(k)}")
    e("s_mov_b64 exec, 0xff")
    for k in range(8, 16):
        e(f"ds_write_b32 v{ad}, v{X+k} offset:{off(k)}")
    e("s_mov_b64 exec, -1")


def gather_x(srd, soff, sc1, do_poll):
    ad = 2
    e(f"v_lshlrev_b32 v{ad}, 4, v{vLANE}")
    for k in range(4, 8):
        e(f"v_mov_b32 v{vQF+k}, 0")

    def ld():
        e(f"buffer_load_dwordx4 {vr(vQF)}, v{ad}, {srd}, {soff} offen{sc1}")
        e("s_mov_b64 exec, 0xff")
        e(f"buffer_load_dwordx4 {vr(vQF+4)}, v{ad}, {srd}, {soff} offen offset:1024{sc1}")
        e("s_mov_b64 exec, -1")
    if do_poll:
        poll(ld, range(vQF, vQF + 8), vX)
    else:
        ld()


def gemv18_setup(which):
    vo, t = 1, 2
    rowb = 9216 if which == "ffn" else 8192
    e(f"v_lshrrev_b32 v{vo}, 4, v{vLANE}")
    e(f"v_lshlrev_b32 v{vo}, 1, v{vo}")
    e(f"v_bfe_u32 v{t}, v{vLANE}, 3, 1")
    e(f"v_add_u32 v{vo}, v{vo}, v{t}")
    e(f"v_mul_u32_u24 v{vo}, {rowb}, v{vo}")
    e(f"v_and_b32 v{t}, {3 if which == 'ffn' else 7}, v{vLANE}")
    e(f"v_lshl_add_u32 v{vo}, v{t}, 4, v{vo}")
    e(f"s_mul_i32 {sA}, s3, {144 * rowb}")
    if which == "ffn":
        e(f"s_lshl_b32 {sB}, {sF}, 6")
    else:
        e(f"s_lshl_b32 {sB}, {sHK}, 9")
        e(f"s_lshl_b32 {sD}, {sF}, 7")
        e(f"s_add_u32 {sB}, {sB}, {sD}")
    e(f"s_add_u32 {sA}, {sA}, {sB}")


def gemv18_loads(which, tts, tag=None):
    vo = 1
    rowb = 9216 if which == "ffn" else 8192
    if which == "ffn":
        for srd, m in ((S_WG, M_MAT0), (S_WU, M_MAT1)):
            e(f"s_mov_b64 exec, {m}")
            for tt in tts:
                e(f"s_add_u32 {sB}, {sA}, {8 * tt * rowb}")
                g.vm(f"buffer_load_dwordx4 {ar(A_WGT+4*tt)}, v{vo}, {srd}, {sB} offen nt", tag)
        e("s_mov_b64 exec, -1")
    else:
        for tt in tts:
            e(f"s_add_u32 {sB}, {sA}, {8 * tt * rowb}")
            g.vm(f"buffer_load_dwordx4 {ar(A_WGT+4*tt)}, v{vo}, {S_WQ}, {sB} offen nt", tag)


def wdown_loads(tag):
    vo, t = 1, 2
    e(f"v_lshrrev_b32 v{vo}, 4, v{vLANE}")
    e(f"v_mul_u32_u24 v{vo}, {8 * 1152}, v{vo}")
    e(f"v_and_b32 v{t}, 15, v{vLANE}")
    e(f"v_lshl_add_u32 v{vo}, v{t}, 4, v{vo}")
    e(f"s_mul_i32 {sA}, {sF}, {32 * 1152}")
    e(f"s_lshl_b32 {sB}, s3, 8")
    e(f"s_add_u32 {sB}, {sB}, {sA}")
    for k in range(8):
        e(f"s_add_u32 {sD}, {sB}, {1152 * k}")
        e(f"s_add_u32 m0, {sLW}, {LDS_WD + 1024 * k}")
        g.vm(f"buffer_load_dwordx4 v{vo}, {S_WD}, {sD} offen nt lds", tag)
    e(f"v_lshrrev_b32 v{vo}, 4, v{vLANE}")
    e(f"v_lshlrev_b32 v{vo}, 3, v{vo}")
    e(f"v_bfe_u32 v{t}, v{vLANE}, 3, 1")
    e(f"v_add_u32 v{vo}, v{vo}, v{t}")
    e(f"v_mul_u32_u24 v{vo}, 1152, v{vo}")
    e(f"v_and_b32 v{t}, 7, v{vLANE}")
    e(f"v_lshl_add_u32 v{vo}, v{t}, 4, v{vo}")
    sk = g.newlabel("WD5")
    wave_is(3, sk)
    for kk in range(4):
        e(f"s_add_u32 {sD}, {sA}, {2304 * kk + 1024}")
        e(f"buffer_load_dwordx4 {ar(A_WD5+4*kk)}, v{vo}, {S_WD}, {sD} offen nt")
    g.label(sk)


def gemv18_compute(wait_w=False):
    ad, t = vC0, vC0 + 1
    e(f"v_lshrrev_b32 v{ad}, 4, v{vLANE}")
    e(f"v_lshlrev_b32 v{ad}, 1, v{ad}")
    e(f"v_bfe_u32 v{t}, v{vLANE}, 3, 1")
    e(f"v_add_u32 v{ad}, v{ad}, v{t}")
    e(f"s_mul_i32 {sA}, s3, 144")
    e(f"v_add_u32 v{ad}, {sA}, v{ad}")
    e(f"v_lshlrev_b32 v{ad}, 2, v{ad}")
    e(f"v_add_u32 v{ad}, {SCR_Y}, v{ad}")
    wa = vC0 + 2
    e(f"v_lshrrev_b32 v{wa}, 5, v{vLANE}")
    e(f"v_lshlrev_b32 v{wa}, 8, v{wa}")
    e(f"v_bfe_u32 v{t}, v{vLANE}, 4, 1")
    e(f"v_lshl_add_u32 v{wa}, v{t}, 7, v{wa}")
    e(f"v_and_b32 v{t}, 7, v{vLANE}")
    e(f"v_lshl_add_u32 v{wa}, v{t}, 2, v{wa}")
    e(f"s_lshl_b32 {sA}, s3, 9")
    e(f"s_add_u32 {sA}, {sA}, {SCR_RED}")
    e(f"v_add_u32 v{wa}, {sA}, v{wa}")
    if wait_w:
        e("s_waitcnt vmcnt(0)")
    e("s_waitcnt lgkmcnt(0)")
    e("s_barrier")
    YV = vKF
    for k in range(9):
        e(f"ds_read2_b32 {vr(YV+2*k, 2)}, v{ad} offset0:{16*k} offset1:{16*k+8}")
    for tt in range(18):
        if tt % 2 == 0:
            e(f"s_waitcnt lgkmcnt({8 - tt // 2})")
        B = vS if tt % 2 == 0 else vT
        for r in range(4):
            e(f"v_and_b32 v{B+r}, v{YV+tt}, v{vM[r]}")
        acc = vO if tt % 2 == 0 else vPK
        c = "0" if tt < 2 else vr(acc)
        e(f"v_mfma_f32_16x16x32_bf16 {vr(acc)}, {ar(A_WGT+4*tt)}, {vr(B)}, {c}")
    for r in range(4):
        e(f"v_add_f32 v{vO+r}, v{vO+r}, v{vPK+r}")
    e(f"s_mov_b64 exec, {M_DIAG}")
    for r in range(4):
        e(f"ds_write_b32 v{wa}, v{vO+r} offset:{32*r}")
    e("s_mov_b64 exec, -1")
    e("s_waitcnt lgkmcnt(0)")
    e("s_barrier")


def red_sum8(ad, dst, between=None, nbetween=0):
    for k in range(4):
        e(f"ds_read2st64_b32 {vr(vKF+2*k, 2)}, v{ad} offset0:{2*k} offset1:{2*k+1}")
    if between:
        between()
    e(f"s_waitcnt lgkmcnt({nbetween})")
    for k in range(4):
        e(f"v_add_f32 v{vKF+2*k}, v{vKF+2*k}, v{vKF+2*k+1}")
    e(f"v_add_f32 v{vKF}, v{vKF}, v{vKF+2}")
    e(f"v_add_f32 v{vKF+4}, v{vKF+4}, v{vKF+6}")
    e(f"v_add_f32 v{dst}, v{vKF}, v{vKF+4}")


def publish_partials(base, nprod, idx_s, acc, acc4):
    vo, t = vC0, vC0 + 1
    gs = nprod * 128
    e(f"v_lshrrev_b32 v{vo}, 4, v{vLANE}")
    e(f"v_mul_u32_u24 v{vo}, {gs}, v{vo}")
    e(f"v_and_b32 v{t}, 7, v{vLANE}")
    e(f"v_lshl_add_u32 v{vo}, v{t}, 4, v{vo}")
    e(f"s_mul_i32 {sA}, s3, {4 * gs}")
    e(f"s_lshl_b32 {sB}, {idx_s}, 7")
    e(f"s_add_u32 {sA}, {sA}, {sB}")
    add_base(sA, base)
    e(f"s_mov_b64 exec, {M_N8}")
    e(f"buffer_store_dwordx4 {vr(acc)}, v{vo}, {S_WS}, {sA} offen sc1")
    sk = g.newlabel("PP")
    wave_is(3, sk)
    e(f"s_add_u32 {sA}, {sA}, {4 * gs}")
    e("s_mov_b64 exec, 0x00ff00ff")
    e(f"buffer_store_dwordx4 {vr(acc4)}, v{vo}, {S_WS}, {sA} offen sc1")
    g.label(sk)
    e("s_mov_b64 exec, -1")


def q_project(gather, startup):
    if not startup:
        sk = g.newlabel("QX")
        wave_is(0, sk)
        gather()
        layernorm_to_Y(False)
        g.flush()
        g.label(sk)
        gemv18_compute()
    else:
        gemv18_compute(wait_w=True)
    sk = g.newlabel("QS")
    wave_is(0, sk)
    ad = vC0
    e(f"v_lshlrev_b32 v{ad}, 2, v{vLANE}")
    e(f"v_add_u32 v{ad}, {SCR_RED}, v{ad}")
    red_sum8(ad, vX)
    e(f"v_mov_b32_dpp v{vY}, v{vX} quad_perm:[1,0,3,2] row_mask:0xf bank_mask:0xf")
    e(f"v_cvt_pk_bf16_f32 v{vX}, v{vX}, v{vY}")
    e(f"v_lshlrev_b32 v{ad}, 1, v{vLANE}")
    e(f"s_lshl_b32 {sA}, {sHK}, 9")
    e(f"s_lshl_b32 {sB}, {sF}, 7")
    e(f"s_add_u32 {sA}, {sA}, {sB}")
    e(f"s_add_u32 {sA}, {sA}, {QB0 if startup else O_QB}")
    e(f"s_mov_b64 exec, {M_EVEN}")
    e(f"buffer_store_dword v{vX}, v{ad}, {S_WS}, {sA} offen sc1")
    e("s_mov_b64 exec, -1")
    if startup:
        e("s_waitcnt vmcnt(0)")
        e(f"s_lshl_b32 {sA}, {sHK}, 2")
        e(f"v_mov_b32 v{ad}, {sA}")
        e(f"v_mov_b32 v{vX}, 1")
        e("s_mov_b64 exec, 1")
        e(f"buffer_atomic_add v{vX}, v{ad}, {S_DBG}, 0 offen")
        e("s_mov_b64 exec, -1")
    g.flush()
    g.label(sk)


def q_addr(ad, qbase):
    t = ad + 1
    e(f"v_bfe_u32 v{ad}, v{vLANE}, 3, 1")
    e(f"v_lshlrev_b32 v{ad}, 8, v{ad}")
    e(f"v_lshrrev_b32 v{t}, 4, v{vLANE}")
    e(f"v_lshl_add_u32 v{ad}, v{t}, 4, v{ad}")
    e(f"s_lshl_b32 {sA}, {sHK}, 9")
    e(f"s_add_u32 {sA}, {sA}, {qbase}")


def load_q_poll(qbase):
    ad = vC0
    q_addr(ad, qbase)

    def ld():
        for s in range(4):
            e(f"buffer_load_dwordx4 {vr(vQF+4*s)}, v{ad}, {S_WS}, {sA} offen offset:{64*s} sc1")
    poll(ld, range(vQF, vQF + 16), vX)


def chain():
    g.comment("================ chain")
    T = lambda n: ts(n, loop=True)
    T("pass end")
    vo, t = 1, 2
    e(f"v_lshrrev_b32 v{vo}, 4, v{vLANE}")
    e(f"v_mul_u32_u24 v{vo}, 36864, v{vo}")
    e(f"v_and_b32 v{t}, 15, v{vLANE}")
    e(f"v_lshl_add_u32 v{vo}, v{t}, 4, v{vo}")
    e(f"s_lshl_b32 {sA}, {sHK}, 8")
    e(f"s_lshr_b32 {sB}, {sSP}, 3")
    e(f"s_lshl_b32 {sB}, {sB}, 7")
    e(f"s_add_u32 {sA}, {sA}, {sB}")
    e(f"s_and_b32 {sB}, {sSP}, 7")
    e(f"s_add_u32 {sA}, {sA}, {sB}")
    e(f"s_mul_i32 {sA}, {sA}, 1152")
    e(f"s_lshl_b32 {sB}, s3, 8")
    e(f"s_add_u32 {sB}, {sB}, {sA}")
    for v in range(4):
        e(f"s_add_u32 {sD}, {sB}, {9216 * v}")
        e(f"buffer_load_dwordx4 {vr(vQF+4*v)}, v{vo}, {S_WO}, {sD} offen nt")
    sk = g.newlabel("WO")
    wave_is(3, sk)
    for v in range(4):
        e(f"s_add_u32 {sD}, {sA}, {9216 * v + 1024}")
        e(f"buffer_load_dwordx4 {vr(vKF+4*v)}, v{vo}, {S_WO}, {sD} offen nt")
    g.label(sk)
    e(f"v_add_f32 v{vL0}, v{vL0}, v{vL1}")
    cross_rows([vL0], [vX], "v_add_f32")
    e(f"v_mov_b32 v{vL1}, v{vL0}")
    e(f"v_mov_b32 v{vL0}, v{vNEGM}")
    a16, a8 = vC0, vC0 + 1
    e(f"v_lshlrev_b32 v{a16}, 4, v{vLANE}")
    e(f"v_add_u32 v{a16}, {SCR_O}, v{a16}")
    e(f"v_lshlrev_b32 v{a8}, 3, v{vLANE}")
    e(f"v_add_u32 v{a8}, {SCR_ML}, v{a8}")
    e(f"s_lshl_b32 {sA}, s3, 10")
    e(f"v_add_u32 v{vX}, {sA}, v{a16}")
    e(f"s_lshl_b32 {sA}, s3, 9")
    e(f"v_add_u32 v{vY}, {sA}, v{a8}")
    e(f"ds_write_b128 v{vX}, {vr(vO)}")
    e(f"ds_write_b64 v{vY}, {vr(vL0, 2)}")
    e("s_waitcnt lgkmcnt(0)")
    e("s_barrier")
    skA = g.newlabel("CA")
    wave_is(0, skA)
    OW = [vO, vS, vT, vPK]
    MLr = [vKF + 2 * w for w in range(4)]
    for w in range(4):
        e(f"ds_read_b64 {vr(MLr[w], 2)}, v{a8} offset:{512*w}")
    for w in range(1, 4):
        e(f"ds_read_b128 {vr(OW[w])}, v{a16} offset:{1024*w}")
    e("s_waitcnt lgkmcnt(3)")
    nm = vL0
    e(f"v_min_f32 v{nm}, v{MLr[0]}, v{MLr[1]}")
    e(f"v_min3_f32 v{nm}, v{nm}, v{MLr[2]}, v{MLr[3]}")
    for w in range(4):
        e(f"v_sub_f32 v{MLr[w]}, v{nm}, v{MLr[w]}")
    for w in range(4):
        e(f"v_exp_f32 v{MLr[w]}, v{MLr[w]}")
    e(f"v_mul_f32 v{vL1}, v{MLr[0]}, v{MLr[0]+1}")
    for w in range(1, 4):
        e(f"v_fma_f32 v{vL1}, v{MLr[w]}, v{MLr[w]+1}, v{vL1}")
    for r in range(4):
        e(f"v_mul_f32 v{vO+r}, v{vO+r}, v{MLr[0]}")
    e("s_waitcnt lgkmcnt(0)")
    for w in range(1, 4):
        for r in range(4):
            e(f"v_fma_f32 v{vO+r}, v{OW[w]+r}, v{MLr[w]}, v{vO+r}")
    e(f"v_and_b32 v{a16}, 15, v{vLANE}")
    e(f"v_lshlrev_b32 v{a8}, 7, v{a16}")
    e(f"v_lshlrev_b32 v{a16}, 10, v{a16}")
    e(f"v_lshrrev_b32 v{vX}, 4, v{vLANE}")
    e(f"v_lshl_add_u32 v{a16}, v{vX}, 4, v{a16}")
    e(f"s_lshl_b32 {sA}, {sHK}, 14")
    e(f"s_lshl_b32 {sB}, {sSP}, 6")
    e(f"s_add_u32 {sA}, {sA}, {sB}")
    add_base(sA, O_RAO)
    e(f"buffer_store_dwordx4 {vr(vO)}, v{a16}, {S_WS}, {sA} offen sc1")
    e(f"s_lshl_b32 {sA}, {sHK}, 11")
    e(f"s_lshl_b32 {sB}, {sSP}, 3")
    e(f"s_add_u32 {sA}, {sA}, {sB}")
    add_base(sA, O_RAML)
    e("s_mov_b64 exec, 0xffff")
    e(f"buffer_store_dwordx2 {vr(vL0, 2)}, v{a8}, {S_WS}, {sA} offen sc1")
    e("s_mov_b64 exec, -1")
    g.flush()
    g.label(skA)
    T("A done")
    ao, am = vC0, vC0 + 1
    e(f"v_and_b32 v{am}, 15, v{vLANE}")
    e(f"v_lshlrev_b32 v{ao}, 6, v{am}")
    e(f"v_lshlrev_b32 v{am}, 3, v{am}")
    e(f"v_lshrrev_b32 v{vX}, 4, v{vLANE}")
    e(f"v_lshl_add_u32 v{ao}, v{vX}, 4, v{ao}")
    e(f"s_lshl_b32 {sB}, s2, 7")
    add_base(sB, O_RAML)
    e(f"s_lshl_b32 {sA}, s2, 10")
    add_base(sA, O_RAO)

    def ldB():
        e(f"buffer_load_dwordx4 {vr(vO)}, v{ao}, {S_WS}, {sA} offen sc1")
        e(f"buffer_load_dwordx2 {vr(vL0, 2)}, v{am}, {S_WS}, {sB} offen sc1")
    poll(ldB, [vO, vO + 1, vO + 2, vO + 3, vL0, vL1], vX)
    T("B polled")
    e(f"v_mov_b32 v{vX}, v{vL0}")
    row_allreduce([vX], "v_min_f32")
    e(f"v_sub_f32 v{vX}, v{vX}, v{vL0}")
    e(f"v_exp_f32 v{vX}, v{vX}")
    e(f"v_mul_f32 v{vL1}, v{vL1}, v{vX}")
    for r in range(4):
        e(f"v_mul_f32 v{vO+r}, v{vO+r}, v{vX}")
    row_allreduce([vL1, vO, vO + 1, vO + 2, vO + 3], "v_add_f32")
    e(f"v_rcp_f32 v{vL1}, v{vL1}")
    for r in range(4):
        e(f"v_mul_f32 v{vO+r}, v{vO+r}, v{vL1}")
    for r in range(4):
        e(f"v_cvt_pk_bf16_f32 v{vPK+r}, v{vO+r}, v{vO+r}")
    acc4 = vC0 + 2
    skb = g.newlabel("WB")
    for v in range(4):
        B = vS if v % 2 == 0 else vT
        for r in range(4):
            e(f"v_and_b32 v{B+r}, v{vPK+v}, v{vM[r]}")
        c = "0" if v == 0 else vr(vO)
        e(f"v_mfma_f32_16x16x32_bf16 {vr(vO)}, {vr(vQF+4*v)}, {vr(B)}, {c}")
    wave_is(3, skb)
    for v in range(4):
        B = vS if v % 2 == 0 else vT
        for r in range(4):
            e(f"v_and_b32 v{B+r}, v{vPK+v}, v{vM[r]}")
        c = "0" if v == 0 else vr(acc4)
        e(f"v_mfma_f32_16x16x32_bf16 {vr(acc4)}, {vr(vKF+4*v)}, {vr(B)}, {c}")
    g.flush()
    g.label(skb)
    publish_partials(O_PB, 256, "s2", vO, acc4)
    T("PB pub")
    sk = g.newlabel("EP")
    e("s_cmp_eq_u32 s3, 0")
    e(f"s_cbranch_scc1 {sk}")
    e(f"s_cmp_eq_u32 {sROLE}, {ROLE_RED}")
    e(f"s_cbranch_scc1 {sk}")
    e(f"s_cmp_lg_u32 {sLAYER}, 0")
    e(f"s_cbranch_scc1 {sk}")
    g.vmq = []
    s_prologue()
    g.label(sk)
    g.flush()

    L_FFN, L_RED, L_Q, L_G = [g.newlabel(x) for x in ("FFN", "RED", "QP", "GG")]
    e(f"s_cmp_eq_u32 {sROLE}, {ROLE_FFN}")
    e(f"s_cbranch_scc1 {L_FFN}")
    e(f"s_cmp_eq_u32 {sROLE}, {ROLE_RED}")
    e(f"s_cbranch_scc1 {L_RED}")
    e(f"s_cmp_lg_u32 {sLAYER}, 0")
    e(f"s_cbranch_scc1 L_exit")
    e(f"s_cmp_eq_u32 {sROLE}, {ROLE_Q}")
    e(f"s_cbranch_scc1 {L_Q}")
    e(f"s_branch {L_G}")

    g.label(L_FFN)
    g.flush()
    la = vC0 + 3
    sk = g.newlabel("FX")
    wave_is(0, sk)
    e(f"s_and_b32 {sA}, {sF}, {NREP - 1}")
    e(f"s_mul_i32 {sA}, {sA}, {REPS}")
    add_base(sA, O_XB0)
    gather_x(S_WS, sA, " sc1", True)
    T("x polled")
    layernorm_to_Y(False)
    g.flush()
    g.label(sk)
    gemv18_compute()
    T("gemv done")
    ad, t = vC0, vC0 + 1
    e(f"v_lshlrev_b32 v{la}, 4, v{vLANE}")
    e(f"v_add_u32 v{la}, {sLW}, v{la}")
    e(f"v_bfe_u32 v{ad}, v{vLANE}, 3, 1")
    e(f"v_lshlrev_b32 v{ad}, 5, v{ad}")
    e(f"v_lshrrev_b32 v{t}, 4, v{vLANE}")
    e(f"v_lshl_add_u32 v{ad}, v{t}, 3, v{ad}")
    e(f"v_and_b32 v{t}, 7, v{vLANE}")
    e(f"v_add_u32 v{ad}, v{ad}, v{t}")
    e(f"v_lshlrev_b32 v{ad}, 2, v{ad}")
    e(f"v_add_u32 v{ad}, {SCR_RED}, v{ad}")

    def rd_wd():
        for k in range(4):
            e(f"ds_read_b128 {vr(vQF+4*k)}, v{la} offset:{LDS_WD + 1024*k}")
    red_sum8(ad, vX, rd_wd, 4)
    e(f"v_cvt_pk_bf16_f32 v{vX}, v{vX}, v{vX}")
    e(f"v_and_b32 v{vX}, 0xffff0000, v{vX}")
    e(f"v_mov_b32_dpp v{vY}, v{vX} row_ror:8 row_mask:0xf bank_mask:0xf")
    G, U = vS, vS + 1
    e(f"v_cndmask_b32 v{G}, v{vY}, v{vX}, {M_N8}")
    e(f"v_cndmask_b32 v{U}, v{vX}, v{vY}, {M_N8}")
    z, w = vS + 2, vS + 3
    e(f"v_mul_f32 v{z}, v{G}, v{G}")
    e(f"v_mov_b32 v{w}, {f32(0.7978845608028654)}")
    e(f"v_mul_f32 v{z}, {f32(0.7978845608028654 * 0.044715)}, v{z}")
    e(f"v_add_f32 v{z}, v{z}, v{w}")
    e(f"v_mul_f32 v{z}, v{z}, v{G}")
    e(f"v_mul_f32 v{z}, {f32(-2.0 * 1.4426950408889634)}, v{z}")
    e(f"v_exp_f32 v{z}, v{z}")
    e(f"v_add_f32 v{z}, 1.0, v{z}")
    e(f"v_rcp_f32 v{z}, v{z}")
    e(f"v_mul_f32 v{z}, v{z}, v{G}")
    e(f"v_cvt_pk_bf16_f32 v{z}, v{z}, v{z}")
    e(f"v_and_b32 v{z}, 0xffff0000, v{z}")
    e(f"v_mul_f32 v{z}, v{z}, v{U}")
    e(f"v_cvt_pk_bf16_f32 v{vPK}, v{z}, v{z}")
    acc4 = vC0 + 4
    for k in range(8):
        B = vKF + 4 * (k % 4)
        for r in range(4):
            e(f"v_and_b32_dpp v{B+r}, v{vPK}, v{vM[r]} row_newbcast:{k} row_mask:0xf bank_mask:0xf")
        e(f"s_waitcnt lgkmcnt({3 if k < 4 else 7 - k})")
        c = "0" if k == 0 else vr(vO)
        e(f"v_mfma_f32_16x16x32_bf16 {vr(vO)}, {vr(vQF+4*(k%4))}, {vr(B)}, {c}")
        if k < 4:
            e("s_nop 3")
            e(f"ds_read_b128 {vr(vQF+4*k)}, v{la} offset:{LDS_WD + 1024*(k+4)}")
    skb = g.newlabel("DB")
    wave_is(3, skb)
    H2 = vS
    for kk in range(4):
        e(f"v_mov_b32_dpp v{H2}, v{vPK} row_newbcast:{2*kk} row_mask:0xf bank_mask:0x3")
        e(f"v_mov_b32_dpp v{H2}, v{vPK} row_newbcast:{2*kk+1} row_mask:0xf bank_mask:0xc")
        B = vKF + 4 * kk
        for r in range(4):
            e(f"v_and_b32 v{B+r}, v{H2}, v{vM[r]}")
        c = "0" if kk == 0 else vr(acc4)
        e(f"v_mfma_f32_16x16x32_bf16 {vr(acc4)}, {ar(A_WD5+4*kk)}, {vr(B)}, {c}")
    for r in range(4):
        e(f"v_mov_b32_dpp v{vT+r}, v{acc4+r} row_ror:8 row_mask:0xf bank_mask:0xf")
    for r in range(4):
        e(f"v_mov_b32 v{vKF+r}, v{vT+r}")
    for r in range(4):
        e(f"v_permlane32_swap_b32 v{vKF+r}, v{vT+r}")
    for r in range(4):
        e(f"v_add_f32 v{acc4+r}, v{acc4+r}, v{vT+r}")
    g.flush()
    g.label(skb)
    publish_partials(O_PD, 144, sF, vO, acc4)
    T("PD pub")
    e(f"s_cmp_lg_u32 {sLAYER}, 0")
    e(f"s_cbranch_scc1 L_exit")
    e(f"s_branch {L_G}")

    g.label(L_RED)
    g.flush()
    xs = vXS
    for stage in range(2):
        nprod = 256 if stage == 0 else 144
        per = nprod // 4
        nl = (per + 7) // 8
        ad = vC0
        e(f"v_lshlrev_b32 v{ad}, 4, v{vLANE}")
        e(f"s_mul_i32 {sA}, {sF}, {nprod * 128}")
        e(f"s_mul_i32 {sB}, s3, {per * 128}")
        e(f"s_add_u32 {sA}, {sA}, {sB}")
        add_base(sA, O_PB if stage == 0 else O_PD)
        if stage == 1:
            for r in range(4):
                e(f"v_mov_b32 v{vKF+16+r}, 0")
        e(f"s_add_u32 {sB}, {sA}, 4096")

        def ldR():
            for k in range(nl):
                if stage == 1 and k == 4:
                    e("s_mov_b64 exec, 0xffffffff")
                so, off = (sA, 1024 * k) if k < 4 else (sB, 1024 * (k - 4))
                e(f"buffer_load_dwordx4 {vr(vKF+4*k)}, v{ad}, {S_WS}, {so} offen offset:{off} sc1")
            if stage == 1:
                e("s_mov_b64 exec, -1")
        poll(ldR, range(vKF, vKF + 4 * nl), vX)
        T("C polled" if stage == 0 else "E polled")
        regs = [vKF + 4 * k for k in range(nl)]
        while len(regs) > 1:
            nxt = []
            for a in range(0, len(regs) - 1, 2):
                for r in range(4):
                    e(f"v_add_f32 v{regs[a]+r}, v{regs[a]+r}, v{regs[a+1]+r}")
                nxt.append(regs[a])
            if len(regs) % 2:
                nxt.append(regs[-1])
            regs = nxt
        R4 = [vKF + r for r in range(4)]
        row_allreduce(R4, "v_add_f32", shifts=(8,))
        cross_rows(R4, [vKF + 4 + r for r in range(4)], "v_add_f32")
        e(f"v_and_b32 v{ad}, 7, v{vLANE}")
        e(f"v_lshlrev_b32 v{ad}, 4, v{ad}")
        e(f"v_add_u32 v{ad}, {SCR_R2 + 0}, v{ad}")
        e(f"s_lshl_b32 {sA}, s3, 7")
        e(f"v_add_u32 v{vY}, {sA}, v{ad}")
        e("s_mov_b64 exec, 0xff")
        e(f"ds_write_b128 v{vY}, {vr(vKF)}")
        e("s_mov_b64 exec, -1")
        e("s_waitcnt lgkmcnt(0)")
        e("s_barrier")
        for w in range(4):
            e(f"ds_read_b128 {vr(vKF+4*w)}, v{ad} offset:{128*w}")
        e("s_waitcnt lgkmcnt(0)")
        for r in range(4):
            e(f"v_add_f32 v{vKF+r}, v{vKF+r}, v{vKF+4+r}")
            e(f"v_add_f32 v{vKF+8+r}, v{vKF+8+r}, v{vKF+12+r}")
        for r in range(4):
            e(f"v_add_f32 v{vKF+r}, v{vKF+r}, v{vKF+8+r}")
        if stage == 0:
            e("s_barrier")
        e(f"v_cvt_pk_bf16_f32 v{vS}, v{vKF}, v{vKF+1}")
        e(f"v_cvt_pk_bf16_f32 v{vS+1}, v{vKF+2}, v{vKF+3}")
        for r in range(4):
            if r % 2 == 0:
                e(f"v_lshlrev_b32 v{vT+r}, 16, v{vS+r//2}")
            else:
                e(f"v_and_b32 v{vT+r}, 0xffff0000, v{vS+r//2}")
        for r in range(4):
            e(f"v_add_f32 v{vT+r}, v{vT+r}, v{xs+r}")
        e(f"v_cvt_pk_bf16_f32 v{vS}, v{vT}, v{vT+1}")
        e(f"v_cvt_pk_bf16_f32 v{vS+1}, v{vT+2}, v{vT+3}")
        for r in range(4):
            if r % 2 == 0:
                e(f"v_lshlrev_b32 v{xs+r}, 16, v{vS+r//2}")
            else:
                e(f"v_and_b32 v{xs+r}, 0xffff0000, v{vS+r//2}")

        def pub_x(off):
            e(f"v_lshrrev_b32 v{ad}, 3, v{vLANE}")
            e(f"v_mul_u32_u24 v{ad}, {REPS}, v{ad}")
            e(f"v_and_b32 v{vY}, 7, v{vLANE}")
            e(f"v_lshl_add_u32 v{ad}, v{vY}, 3, v{ad}")
            e(f"s_mul_i32 {sA}, s3, {8 * REPS}")
            e(f"s_lshl_b32 {sB}, {sF}, 6")
            e(f"s_add_u32 {sA}, {sA}, {sB}")
            add_base(sA, off)
            e(f"buffer_store_dwordx2 {vr(vS, 2)}, v{ad}, {S_WS}, {sA} offen sc1")
        if stage == 0:
            pub_x(O_XB0)
            T("C pub")
        else:
            sk, sk2 = g.newlabel("OUT"), g.newlabel("OUT2")
            e(f"s_cmp_lg_u32 {sLAYER}, 0")
            e(f"s_cbranch_scc1 {sk}")
            pub_x(O_XB1)
            T("E pub")
            e(f"s_branch {L_G}")
            g.label(sk)
            g.flush()
            wave_is(0, sk2)
            e(f"s_lshl_b32 {sA}, {sF}, 6")
            e(f"v_lshlrev_b32 v{ad}, 1, v{vLANE}")
            for r in range(4):
                e(f"v_lshrrev_b32 v{vT+r}, 16, v{xs+r}")
            e("s_mov_b64 exec, 0xff")
            for r in range(4):
                e(f"buffer_store_short v{vT+r}, v{ad}, {S_OUT}, {sA} offen offset:{16*r}")
            e("s_mov_b64 exec, -1")
            g.label(sk2)
            T("E pub")
            e("s_branch L_exit")

    g.label(L_Q)
    g.flush()

    def gq():
        e(f"s_lshl_b32 {sA}, {sHK}, 2")
        e(f"s_add_u32 {sA}, {sA}, {sF}")
        e(f"s_and_b32 {sA}, {sA}, {NREP - 1}")
        e(f"s_mul_i32 {sA}, {sA}, {REPS}")
        e(f"s_add_u32 {sA}, {sA}, {O_XB1}")
        gather_x(S_WS, sA, " sc1", True)
        T("x2 polled")
    q_project(gq, False)
    T("q pub")
    g.label(L_G)
    g.flush()
    sk, w0, j = g.newlabel("GP"), g.newlabel("W0"), g.newlabel("WJ")
    e("s_cmp_eq_u32 s3, 0")
    e(f"s_cbranch_scc1 {w0}")
    e(f"s_cmp_eq_u32 {sROLE}, {ROLE_RED}")
    e(f"s_cbranch_scc0 {j}")
    g.vmq = []
    s_prologue()
    e(f"s_branch {j}")
    g.label(w0)
    g.flush()
    g.vmq = []
    s_prologue()
    load_q_poll(O_QB)
    ad = vC0 + 2
    e(f"v_lshlrev_b32 v{ad}, 4, v{vLANE}")
    e(f"v_add_u32 v{ad}, {SCR_Q}, v{ad}")
    for s_ in range(4):
        e(f"ds_write_b128 v{ad}, {vr(vQF+4*s_)} offset:{1024*s_}")
    e("s_waitcnt lgkmcnt(0)")
    g.label(j)
    g.flush()
    e("s_barrier")
    ad = vC0 + 2
    e(f"v_lshlrev_b32 v{ad}, 4, v{vLANE}")
    e(f"v_add_u32 v{ad}, {SCR_Q}, v{ad}")
    for s_ in range(4):
        e(f"ds_read_b128 {vr(vQF+4*s_)}, v{ad} offset:{1024*s_}")
    e(f"s_mov_b32 {sLAYER}, 1")
    e(f"s_mov_b32 {sBASE}, {BLK}")
    e("s_waitcnt lgkmcnt(0)")
    T("q ready")
    e(f"s_mov_b32 {sTSB}, {TS_PER}")


class RPhase:
    def __init__(s):
        s.ringc = 0
        s.slot_of = {}
        s.busy = {}

    def clone(s):
        c = RPhase()
        c.ringc, c.slot_of, c.busy = s.ringc, dict(s.slot_of), dict(s.busy)
        return c

    def issue(s, u):
        kind, idx = u
        if kind == "R":
            e(f"s_add_u32 {sT}, {sKVR}, {idx * 4096}")
            if HK[idx][0] == "l":
                slot = HK[idx][1]
            else:
                slot = s.ringc % RING
                s.ringc += 1
                assert slot not in s.busy, (u, slot, s.busy)
                s.busy[slot] = u
            s.slot_of[u] = slot
            issue_tile(sT, slot * 4096, hreg(HV[idx]), u)
        elif kind == "S":
            assert idx % RING not in s.busy, (u, s.busy)
            issue_S_static(idx)
        elif kind == "WG":
            gemv18_setup("ffn")
            gemv18_loads("ffn", range(9 * idx, 9 * idx + 9), ("K", u))
        elif kind == "WD":
            wdown_loads(("K", u))
        else:
            raise ValueError(u)

    def complete(s, u):
        kind, idx = u
        g.wait_vm(("K", u))
        via = kind == "R" and HK[idx][0] != "l"
        if via:
            kreg = hreg(HK[idx])
            for s_ in range(4):
                e(f"ds_read_b128 {kreg(s_)}, v{vDSK[s_]} offset:{s.slot_of[u] * 4096}")
        if kind in ("R", "S"):
            g.wait_vm(("V", u))
        if via:
            e("s_waitcnt lgkmcnt(0)")
            del s.busy[s.slot_of[u]]


def main():
    hdr = []
    ref = open(os.path.join(os.path.dirname(__file__), "..", "cdna_kernels", NAME + ".s.ref")).read().split("\n")
    for ln in ref:
        if ln.startswith("; @launch"):
            hdr.append(f"; @launch grid=(256,1,1) block=(256,1,1) lds={LDS_BYTES}")
        elif ln.startswith(";"):
            hdr.append(ln)
        else:
            break
    g.raw("\n".join(hdr))
    g.raw('.amdgcn_target "amdgcn-amd-amdhsa--gfx950"')
    g.raw(".text")
    g.raw(f".globl {NAME}_kernel")
    g.raw(".p2align 8")
    g.raw(f".type {NAME}_kernel,@function")
    g.raw(f"{NAME}_kernel:")
    e("s_cmp_ge_u32 s2, 256")
    e("s_cbranch_scc1 L_quit")
    srds = [(4, 8, KV_BYTES), (8, 16, KV_BYTES), (12, 24, 576 * 8192), (16, 32, 4096 * 1152),
            (20, 48, 576 * 9216), (24, 56, 576 * 9216), (28, 64, 4608 * 1152), (32, 88, WS_SIZE),
            (36, 80, 256), (40, 0, 1152), (44, 72, 1152), (48, 88, WS_SIZE)]
    for s, off, size in srds:
        e(f"s_load_dwordx2 s[{s}:{s+1}], s[0:1], {off}")
    for s, off, size in srds:
        e(f"s_mov_b32 s{s+2}, {size}")
        e(f"s_mov_b32 s{s+3}, 0x00020000")
    if P["DEBUG_TS"]:
        e(f"v_mov_b32 v{vTS}, 0")
    e(f"s_mov_b32 {sTSB}, 0")
    e(f"s_mov_b32 {sLAYER}, 0")
    e(f"s_mov_b32 {sBASE}, 0")
    e("v_lshrrev_b32 v1, 6, v0")
    e("v_and_b32 v0, 63, v0")
    e("v_readfirstlane_b32 s3, v1")
    e(f"s_lshr_b32 {sHK}, s2, 4")
    e(f"s_and_b32 {sSP}, s2, 15")
    e(f"s_lshl_b32 {sA}, {sHK}, 24")
    e(f"s_lshl_b32 {sB}, {sSP}, 2")
    e(f"s_add_u32 {sB}, {sB}, s3")
    e(f"s_mul_i32 {sD}, {sB}, {NR_H * 4096}")
    e(f"s_sub_u32 {sT}, {sB}, {NHEAVY * 4}")
    e(f"s_mul_i32 {sT}, {sT}, {NR_L * 4096}")
    e(f"s_add_u32 {sT}, {sT}, {NHEAVY * 4 * NR_H * 4096}")
    e(f"s_cmp_lt_u32 {sSP}, {NHEAVY}")
    e(f"s_cselect_b32 {sB}, {sD}, {sT}")
    e(f"s_add_u32 {sKVR}, {sA}, {sB}")
    e(f"s_mul_i32 {sB}, s3, {NS * 4096}")
    e(f"s_add_u32 {sKVS}, {sA}, {sB}")
    e(f"s_add_u32 {sKVS}, {sKVS}, {R_TOT * 4096}")
    e(f"s_mul_i32 {sLW}, s3, {WAVE_LDS}")
    e(f"s_mov_b32 {sC}, {f32(128 ** -0.5 * 1.4426950408889634)}")
    e(f"s_mov_b32 {sTHR}, {f32(8.0)}")
    lr = g.newlabel("RL")
    e(f"s_mov_b32 {sROLE}, {ROLE_FFN}")
    e(f"s_mul_i32 {sF}, {sHK}, 9")
    e(f"s_add_u32 {sF}, {sF}, {sSP}")
    e(f"s_cmp_lt_u32 {sSP}, 9")
    e(f"s_cbranch_scc1 {lr}")
    e(f"s_mov_b32 {sROLE}, {ROLE_Q}")
    e(f"s_sub_u32 {sF}, {sSP}, 9")
    e(f"s_cmp_lt_u32 {sSP}, 13")
    e(f"s_cbranch_scc1 {lr}")
    e(f"s_mov_b32 {sROLE}, {ROLE_RED}")
    e(f"s_mov_b32 {sF}, {sHK}")
    e(f"s_cmp_eq_u32 {sSP}, 13")
    e(f"s_cbranch_scc1 {lr}")
    e(f"s_add_u32 {sF}, {sHK}, 16")
    e(f"s_cmp_eq_u32 {sSP}, 14")
    e(f"s_cselect_b32 {sA}, 1, 0")
    e(f"s_cmp_lt_u32 {sHK}, 2")
    e(f"s_cselect_b32 {sA}, {sA}, 0")
    e(f"s_cmp_eq_u32 {sA}, 1")
    e(f"s_cbranch_scc1 {lr}")
    e(f"s_mov_b32 {sROLE}, {ROLE_NONE}")
    g.label(lr)
    for m, val in ((66, 0x00FF00FF00FF00FF), (68, 0xFF00FF0000FF00FF), (70, 0x0F0F0F0F0F0F0F0F), (72, 0xF0F0F0F0F0F0F0F0), (74, 0x5555555555555555)):
        e(f"s_mov_b32 s{m}, 0x{val & 0xffffffff:08x}")
        e(f"s_mov_b32 s{m+1}, 0x{val >> 32:08x}")
    e("v_lshrrev_b32 v1, 4, v0")
    e("v_and_b32 v2, 15, v0")
    e("v_xor_b32 v38, v1, v2")
    for t in range(4):
        e(f"v_xor_b32 v{vX}, {4*t}, v38")
        e(f"v_lshlrev_b32 v{vX}, 4, v{vX}")
        e(f"v_lshl_add_u32 v{vKOFF[t]}, v1, 8, v{vX}")
        e(f"v_lshl_add_u32 v{vDSK[t]}, v2, 8, v{vX}")
        e(f"v_add_u32 v{vDSK[t]}, {sLW}, v{vDSK[t]}")
    e(f"v_lshlrev_b32 v{vVOFF}, 10, v1")
    e(f"v_lshl_add_u32 v{vVOFF}, v2, 4, v{vVOFF}")
    if P["EXP"] & 2:
        e(f"v_lshlrev_b32 v{vVOFF}, 4, v0")
    if P["EXP"] & 4:
        for t in range(4):
            e(f"v_lshlrev_b32 v{vKOFF[t]}, 4, v0")
    e("v_and_b32 v38, 1, v0")
    e("v_cmp_eq_u32 vcc, 1, v38")
    e(f"v_mov_b32 v{vX}, 0x0000ffff")
    e(f"v_mov_b32 v{vY}, 0xffff0000")
    e(f"v_cndmask_b32 v{vX}, v{vX}, v{vY}, vcc")
    e("v_bfe_u32 v38, v0, 1, 2")
    for r in range(4):
        e(f"v_cmp_eq_u32 vcc, {r}, v38")
        e(f"v_cndmask_b32 v{vM[r]}, 0, v{vX}, vcc")
    e("s_waitcnt lgkmcnt(0)")
    ts("start")
    L_NQ, L_ST = g.newlabel("NQ"), g.newlabel("ST")
    e(f"s_cmp_eq_u32 {sROLE}, {ROLE_Q}")
    e(f"s_cbranch_scc0 {L_NQ}")
    sk = g.newlabel("X0")
    wave_is(0, sk)
    gather_x(S_X, "0", "", False)
    g.label(sk)
    gemv18_setup("q")
    gemv18_loads("q", range(18))
    g.label(L_NQ)
    e(f"v_mov_b32 v{vS}, -1")
    for r in range(1, 4):
        e(f"v_mov_b32 v{vS+r}, -1")
    e(f"v_lshlrev_b32 v{vX}, 4, v0")
    e(f"s_mul_i32 {sA}, s2, {CLR_PER_WG}")
    e(f"s_lshl_b32 {sB}, s3, 10")
    e(f"s_add_u32 {sA}, {sA}, {sB}")
    e(f"buffer_store_dwordx4 {vr(vS)}, v{vX}, {S_WS}, {sA} offen sc1")
    e(f"s_add_u32 {sA}, {sA}, 4096")
    e(f"buffer_store_dwordx4 {vr(vS)}, v{vX}, {S_WS}, {sA} offen sc1")
    sk = g.newlabel("CLR")
    e("s_cmp_lt_u32 s3, 3")
    e(f"s_cbranch_scc0 {sk}")
    e(f"s_add_u32 {sA}, {sA}, 4096")
    sk2 = g.newlabel("CLRH")
    e("s_cmp_eq_u32 s3, 2")
    e(f"s_cbranch_scc0 {sk2}")
    e("s_mov_b64 exec, 0xffffffff")
    g.label(sk2)
    e(f"buffer_store_dwordx4 {vr(vS)}, v{vX}, {S_WS}, {sA} offen sc1")
    e("s_mov_b64 exec, -1")
    g.label(sk)
    sk = g.newlabel("CZ")
    e("s_cmp_eq_u32 s3, 3")
    e(f"s_cbranch_scc0 {sk}")
    e("s_cmp_lt_u32 s2, 128")
    e(f"s_cbranch_scc0 {sk}")
    e(f"s_lshl_b32 {sA}, s2, 8")
    e(f"s_add_u32 {sA}, {sA}, {O_CNT}")
    e(f"v_mov_b32 v{vY}, 0")
    e("s_mov_b64 exec, 1")
    e(f"buffer_store_dword v{vY}, v{vY}, {S_WS}, {sA} offen sc1")
    e("s_mov_b64 exec, -1")
    g.label(sk)
    sk = g.newlabel("RX")
    e(f"s_cmp_eq_u32 {sROLE}, {ROLE_RED}")
    e(f"s_cbranch_scc0 {sk}")
    e(f"s_lshl_b32 {sA}, {sF}, 6")
    e(f"v_and_b32 v{vY}, 7, v0")
    e(f"v_lshlrev_b32 v{vY}, 1, v{vY}")
    for r in range(4):
        e(f"buffer_load_ushort v{vXS+r}, v{vY}, {S_X}, {sA} offen offset:{16*r}")
    g.label(sk)
    e(f"s_cmp_eq_u32 {sROLE}, {ROLE_Q}")
    e(f"s_cbranch_scc0 {L_ST}")
    sk = g.newlabel("LN0")
    wave_is(0, sk)
    e("s_waitcnt vmcnt(0)")
    layernorm_to_Y(True)
    g.flush()
    g.label(sk)
    q_project(None, True)
    ts("q pub")
    g.label(L_ST)
    g.flush()
    common = [("R", r) for r in range(NR_H) if HK[r][0] != "l"] + [("R", r) for r in range(NR_H) if HK[r][0] == "l"]
    Sun = [("S", i) for i in range(RING)]
    paths = {
        "light": common + [("R", NR_H + 2), ("R", NR_H + 3), ("R", NR_H), ("R", NR_H + 1)] + Sun,
        "ffn": common + [("WG", 0), ("WG", 1), ("WD", 0)] + Sun,
        "q": common + Sun,
    }
    restore_nr()
    g.vmq = [("st", 0)]
    rp = RPhase()
    for k in range(DR):
        rp.issue(common[k])
    kfork = len(common) - DR
    K_CLR = 3
    assert K_CLR < kfork
    for k in range(kfork):
        rp.complete(common[k])
        if P["DEBUG_TS"] >= 2 and k in (0, 2, 5):
            ts(f"unit {k}")
        if k == K_CLR:
            e("s_barrier")
            sk = g.newlabel("CS")
            wave_is(0, sk)
            e(f"v_mov_b32 v{vX}, 64")
            e(f"v_mov_b32 v{vY}, 1")
            e("s_mov_b64 exec, 1")
            e(f"buffer_atomic_add v{vY}, v{vX}, {S_DBG}, 0 offen")
            e("s_mov_b64 exec, -1")
            g.label(sk)
            for r in range(4):
                e(f"v_lshlrev_b32 v{vXS+r}, 16, v{vXS+r}")
            ts("clr sig")
        rp.issue(common[k + DR])
    L_JOIN = g.newlabel("RJ")
    labs = {n: g.newlabel("RP") for n in paths}
    e(f"s_cmp_eq_u32 {sROLE}, {ROLE_FFN}")
    e(f"s_cbranch_scc1 {labs['ffn']}")
    e(f"s_cmp_eq_u32 {sROLE}, {ROLE_Q}")
    e(f"s_cbranch_scc1 {labs['q']}")
    g.flush()
    vm0 = list(g.vmq)
    for n in ("light", "ffn", "q"):
        units = paths[n]
        g.label(labs[n])
        g.flush()
        g.vmq = list(vm0)
        r2 = rp.clone()
        KF_FLAG, KF_Q = kfork, kfork + 2
        for k in range(kfork, len(units)):
            u = units[k]
            if k + DR < len(units) or u[0] != "S":
                r2.complete(u)
            if k == KF_FLAG:
                e(f"s_lshl_b32 {sA}, {sHK}, 2")
                e(f"v_mov_b32 v{vX}, {sA}")
                g.vm(f"buffer_load_dword v{vY}, v{vX}, {S_DBG}, 0 offen sc1", ("flag", 0))
            if k == KF_Q:
                g.wait_vm(("flag", 0))
                lp, dn = g.newlabel("QF"), g.newlabel("QD")
                e(f"s_mov_b32 {sSPIN}, {P['SPIN']}")
                g.label(lp)
                e(f"v_cmp_ne_u32 vcc, 4, v{vY}")
                e(f"s_cbranch_vccz {dn}")
                e(f"buffer_load_dword v{vY}, v{vX}, {S_DBG}, 0 offen sc1")
                e("s_waitcnt vmcnt(0)")
                e(f"s_sub_u32 {sSPIN}, {sSPIN}, 1")
                e(f"s_cmp_lg_u32 {sSPIN}, 0")
                e(f"s_cbranch_scc1 {lp}")
                g.label(dn)
                ts("flag ok")
                q_addr(vC0, QB0)
                for s in range(4):
                    g.vm(f"buffer_load_dwordx4 {vr(vQF+4*s)}, v{vC0}, {S_WS}, {sA} offen offset:{64*s} sc1", ("q", 0))
            if k + DR < len(units):
                r2.issue(units[k + DR])
        g.wait_vm(("q", 0))
        g.flush()
        if n != "q":
            e(f"s_branch {L_JOIN}")
    g.label(L_JOIN)
    g.flush()
    ts("R loaded")
    g.label("L_pass")
    emit_pass()
    chain()
    e("s_branch L_pass")
    g.label("L_exit")
    if P["DEBUG_TS"]:
        ts("end")
        e(f"s_lshl_b32 {sA}, s2, 2")
        e(f"s_add_u32 {sA}, {sA}, s3")
        e(f"s_lshl_b32 {sA}, {sA}, 8")
        e(f"s_add_u32 {sA}, {sA}, {WS_TS}")
        e("s_mov_b64 exec, -1")
        e(f"v_lshlrev_b32 v1, 2, v{vLANE}")
        e(f"buffer_store_dword v{vTS}, v1, {S_WS}, {sA} offen")
    g.label("L_quit")
    e("s_endpgm")
    emit_stubs()
    g.raw(".section .rodata,\"a\"")
    g.raw(".p2align 6")
    g.raw(f".amdhsa_kernel {NAME}_kernel")
    g.raw("  .amdhsa_next_free_vgpr 512")
    g.raw("  .amdhsa_next_free_sgpr 102")
    g.raw("  .amdhsa_accum_offset 256")
    g.raw("  .amdhsa_group_segment_fixed_size 0")
    g.raw("  .amdhsa_kernarg_size 96")
    g.raw("  .amdhsa_user_sgpr_count 2")
    g.raw("  .amdhsa_user_sgpr_kernarg_segment_ptr 1")
    g.raw("  .amdhsa_system_sgpr_workgroup_id_x 1")
    g.raw(".end_amdhsa_kernel")
    out = os.environ.get("OUT", os.path.join(os.path.dirname(__file__), "..", "cdna_kernels", NAME + ".s"))
    txt = g.text()
    if P["DEBUG_TS"]:
        txt = txt.replace("; @launch", "; TSNAMES " + json.dumps(TSN) + "\n; @launch", 1)
    open(out, "w").write(txt)
    print("instructions:", g.count, "bytes:", len(txt), "NR", NR_H, NR_L, "NS", NS, "J0", J0, "K0", K0)


main()
```

```python
import sys, os, struct, json
sys.path.insert(0, os.path.dirname(__file__))
from asmlib import Asm

NAME = "interleave_layers__gqa_block_cached__glu_gated_geglu__decode"

P = dict(
    RING=5,
    DEBUG_TS=0,
    SPIN=200000,
    D=3,
    LREQ=6,
    NREP=32,
    DR=3,
    NLT=0,
    EXP=0,
)
for a in sys.argv[1:]:
    if "=" in a:
        k, v = a.split("=")
        assert k in P, k
        P[k] = int(v)
RING, D, LREQ, DR = P["RING"], P["D"], P["LREQ"], P["DR"]
NKL = 9 - RING
NR_L = 18 - RING
NR_H = NR_L - 4
NHEAVY = 13
R_TOT = 4 * (NHEAVY * NR_H + (16 - NHEAVY) * NR_L)
NS = (4096 - R_TOT) // 4
assert R_TOT + 4 * NS == 4096
APRE = 3
J0 = RING * ((APRE + RING - D + 1 + RING - 1) // RING)
while J0 < 2 * RING:
    J0 += RING
K0 = J0 + D
NLT = P["NLT"]
NSP = NS - 16 * NLT
assert RING + NLT <= K0
assert D <= RING and LREQ - D < RING and LREQ >= D + 1 and K0 - LREQ >= RING


def f32(x):
    return "0x%08x" % struct.unpack("<I", struct.pack("<f", x))[0]


WAVE_LDS = 9 * 4096
SCR = 4 * WAVE_LDS
SCR_O, SCR_ML, SCR_Y, SCR_RED = SCR, SCR + 4096, SCR + 6144, SCR + 8704
SCR_Q = SCR + 10752
SCR_R2 = SCR + 14848
LDS_BYTES = 163840
assert SCR_RED + 2048 <= SCR_Q and SCR_Q + 4096 <= SCR_R2 and SCR_R2 + 512 <= LDS_BYTES
LDS_WD = (RING + NKL - 2) * 4096

REPS = 2048
NREP = P["NREP"]
O_PB = 0x0
O_PD = 0x90000
O_RAO = 0xE4000
O_RAML = 0x124000
O_QB = 0x12C000
O_XB0 = 0x130000
O_XB1 = 0x140000
BLK = 0x150000
assert NREP * REPS <= 0x10000
CLEAR_BYTES = 2 * BLK
CLR_PER_WG = CLEAR_BYTES // 256
assert CLR_PER_WG == 10752
QB0 = 0x300000
O_CNT = 0x310000
WS_TS = 0x400000
WS_SIZE = 0x800000

(S_K, S_V, S_WQ, S_WO, S_WG, S_WU, S_WD, S_WS, S_DBG, S_X, S_OUT, S_CNT) = [f"s[{4*k+4}:{4*k+7}]" for k in range(12)]
NRK, NRV, NRC = "s6", "s10", "s50"
(sKVR, sKVS, sT, sC, sTHR, sHK, sSP, sLW, sA, sB, sD, sF, sSPIN, sCNT) = [f"s{52+k}" for k in range(14)]
M_N8, M_DIAG, M_MAT0, M_MAT1, M_EVEN = [f"s[{66+2*k}:{67+2*k}]" for k in range(5)]
sTK = [f"s{76+k}" for k in range(5)]
sROLE, sBASE, sLAYER, sTSB, sDYN0, sLT, sPOL = "s81", "s82", "s83", "s84", "s85", "s86", "s87"
KV_BYTES = 0x10000000
ROLE_FFN, ROLE_Q, ROLE_RED, ROLE_NONE = 0, 1, 2, 3

vLANE = 0
vTS = 3
vKOFF = [4, 5, 6, 7]
vVOFF = 8
vDSK = [9, 10, 11, 12]
vM = [13, 14, 15, 16]
vNEGM, vL0, vL1 = 17, 18, 19
vO, vS, vT, vPK = 20, 24, 28, 32
vX, vY = 36, 37
vC0 = 38
vTK = [38, 39, 40, 41, 42]
vCLR = vTK[RING - 1]
vTKA = 43
vXS = 44
vKF, vQF = 48, 64

A_slots = [("a", 16 * k) for k in range(RING, 16)]
V_slots = [("v", 80 + 16 * k) for k in range(11)]
TOP6 = A_slots[-6:]
_rest = V_slots + A_slots[:-6]
HK, HV = {}, {}
for r in range(NR_H):
    if r < NKL - 2:
        HK[r] = ("l", RING + r)
    else:
        HK[r] = _rest.pop(0)
for r in range(NR_H):
    HV[r] = _rest.pop(0)
assert not _rest
HK[NR_H], HK[NR_H + 1] = ("l", RING + NKL - 2), ("l", RING + NKL - 1)
HK[NR_H + 2], HK[NR_H + 3] = TOP6[4], TOP6[5]
for k in range(4):
    HV[NR_H + k] = TOP6[k]
A_WGT = TOP6[0][1]
A_WD5 = A_WGT + 72


def vr(b, n=4):
    return f"v[{b}:{b+n-1}]"


def ar(b, n=4):
    return f"a[{b}:{b+n-1}]"


def hreg(home):
    kind, base = home
    assert kind in "va"
    return lambda k: f"{kind}[{base+4*k}:{base+4*k+3}]"


g = Asm()
e = g.e
stubs = []
TSN = [""] * 64
TS_LOOP0, TS_PER = 8, 27
_ts_start, _ts_loop = [], []


def ts(name, loop=False):
    if not P["DEBUG_TS"]:
        return
    lst = _ts_loop if loop else _ts_start
    if name not in lst:
        lst.append(name)
    k = lst.index(name)
    e("s_memrealtime s[0:1]")
    if loop:
        assert k < 18
        TSN[TS_LOOP0 + k] = "c0." + name
        TSN[TS_LOOP0 + TS_PER + k] = "c1." + name
        e(f"s_add_u32 m0, {sTSB}, {TS_LOOP0 + k}")
        e("s_waitcnt lgkmcnt(0)")
        e(f"v_writelane_b32 v{vTS}, s0, m0")
    else:
        if name == "end":
            k = 63
        assert k < TS_LOOP0 or k == 63
        TSN[k] = name
        e("s_waitcnt lgkmcnt(0)")
        e(f"v_writelane_b32 v{vTS}, s0, {k}")


def ring_v(slot):
    return hreg(("a", 16 * slot))


def issue_tile(soff, klds, vreg, tag, nt=" nt"):
    e(f"s_add_u32 m0, {sLW}, {klds}")
    for t in range(4):
        g.vm(f"buffer_load_dwordx4 v{vKOFF[t]}, {S_K}, {soff} offen offset:{1024*t}{nt} lds", ("K", tag))
    for v in range(4):
        g.vm(f"buffer_load_dwordx4 {vreg(v)}, v{vVOFF}, {S_V}, {soff} offen offset:{(1024 if P['EXP'] & 2 else 256)*v}{nt}", ("V", tag))


def issue_S_static(i):
    slot = i % RING
    c0 = 16 * i
    c1 = c0 if i < RING else (NSP + 16 * (i - RING) if i < RING + NLT else 16 * (i - NLT))
    if c0 == c1:
        e(f"s_add_u32 {sTK[slot]}, {sSP}, {c0}")
    else:
        e(f"s_mov_b32 {sA}, {c0}")
        e(f"s_cmp_eq_u32 {sLAYER}, 0")
        e(f"s_cselect_b32 {sA}, {sA}, {c1}")
        e(f"s_add_u32 {sTK[slot]}, {sSP}, {sA}")
    e(f"s_lshl_b32 {sT}, {sTK[slot]}, 12")
    e(f"s_add_u32 {sT}, {sT}, {sKVS}")
    issue_tile(sT, slot * 4096, ring_v(slot), ("S", i))


def request_ticket(j):
    r = vTK[j % RING]
    e(f"v_mov_b32 v{r}, 1")
    g.vm(f"buffer_atomic_add v{r}, v{vTKA}, {S_CNT}, {sCNT} offen sc0", ("T", j + LREQ))


def issue_S_dyn(i):
    slot = i % RING
    r = vTK[(i - LREQ) % RING]
    g.wait_vm(("T", i))
    e(f"v_readfirstlane_b32 {sTK[slot]}, v{r}")
    e(f"s_add_u32 {sTK[slot]}, {sTK[slot]}, {sDYN0}")
    e(f"s_mov_b32 {sPOL}, 0")
    e(f"s_cmp_lt_u32 {sTK[slot]}, {NSP}")
    ok = g.newlabel("TK")
    e(f"s_cbranch_scc1 {ok}")
    e(f"s_mov_b32 {sDYN0}, 0x40000000")
    e(f"s_mov_b32 {NRC}, 0")
    e(f"s_mov_b32 {sPOL}, 1")
    e(f"s_mov_b32 {sTK[slot]}, {sLT}")
    e(f"s_add_u32 {sLT}, {sLT}, 16")
    e(f"s_cmp_lt_u32 {sTK[slot]}, {NS}")
    e(f"s_cselect_b32 {NRK}, {KV_BYTES}, 0")
    e(f"s_cselect_b32 {NRV}, {KV_BYTES}, 0")
    g.label(ok)
    e(f"s_lshl_b32 {sT}, {sTK[slot]}, 12")
    e(f"s_add_u32 {sT}, {sT}, {sKVS}")
    e(f"s_cmp_lt_u32 {sTK[slot]}, {NS}")
    e(f"s_cselect_b32 {sT}, {sT}, 0")


def issue_tile_dyn(i):
    slot = i % RING
    if NLT == 0:
        issue_tile(sT, slot * 4096, ring_v(slot), ("S", i))
        return
    la, lb = g.newlabel("PA"), g.newlabel("PB")
    e(f"s_cmp_eq_u32 {sPOL}, 0")
    e(f"s_cbranch_scc0 {la}")
    q0 = list(g.vmq)
    issue_tile(sT, slot * 4096, ring_v(slot), ("S", i))
    e(f"s_branch {lb}")
    g.label(la)
    g.vmq = q0
    issue_tile(sT, slot * 4096, ring_v(slot), ("S", i), nt="")
    g.label(lb)


def emit_visit(kind, idx, after=None):
    g.comment(f"visit {kind}{idx}")
    if kind == "S":
        slot = idx % RING
        khome, vreg = ("l", slot), ring_v(slot)
        g.wait_vm(("K", ("S", idx)))
    else:
        khome, vreg = HK[idx], hreg(HV[idx])
    kread = khome[0] == "l"
    kreg = hreg(("v", vKF)) if kread else hreg(khome)
    if kind == "S" and (P["EXP"] & 1) and idx >= 1:
        g.wait_vm(("V", ("S", idx)))
        if after:
            after()
        return
    if kread:
        for s in range(4):
            e(f"ds_read_b128 {vr(vKF+4*s)}, v{vDSK[s]} offset:{khome[1] * 4096}")
    for s in range(4):
        if kread:
            e(f"s_waitcnt lgkmcnt({3-s})")
        c = "0" if s == 0 else vr(vS)
        e(f"v_mfma_f32_16x16x32_bf16 {vr(vS)}, {kreg(s)}, {vr(vQF+4*s)}, {c}")
    for r in range(4):
        e(f"v_fma_f32 v{vT+r}, v{vS+r}, {sC}, v{vNEGM}")
    e(f"v_max3_f32 v{vX}, v{vT}, v{vT+1}, v{vT+2}")
    e(f"v_max_f32 v{vX}, v{vX}, v{vT+3}")
    e(f"v_cmp_lt_f32 vcc, {sTHR}, v{vX}")
    ls, lb = g.newlabel("RS"), g.newlabel("RB")
    e(f"s_cbranch_vccnz {ls}")
    stubs.append((ls, lb, g.snapshot()))
    g.label(lb)
    for r in range(4):
        e(f"v_exp_f32 v{vT+r}, v{vT+r}")
    for r in range(4):
        e(f"v_cvt_pk_bf16_f32 v{vPK+r}, v{vT+r}, v{vT+r}")
        e(f"v_add_f32 v{vL0 + (r & 1)}, v{vL0 + (r & 1)}, v{vT+r}")
    if kind == "S":
        g.wait_vm(("V", ("S", idx)))

    def ands(v):
        for r in range(4):
            e(f"v_and_b32 v{vKF+4*v+r}, v{vPK+v}, v{vM[r]}")

    def pv(v):
        e(f"v_mfma_f32_16x16x32_bf16 {vr(vO)}, {vreg(v)}, {vr(vKF+4*v)}, {vr(vO)}")
    ands(0); ands(1); pv(0); ands(2); pv(1); ands(3); pv(2); pv(3)
    if after:
        after()


def emit_stubs():
    for ls, lb, snap in stubs:
        g.restore(snap)
        g.label(ls)
        e(f"v_max3_f32 v{vX}, v{vS}, v{vS+1}, v{vS+2}")
        e(f"v_max_f32 v{vX}, v{vX}, v{vS+3}")
        e(f"v_mul_f32 v{vX}, {sC}, v{vX}")
        e(f"v_mov_b32 v{vY}, v{vX}")
        e(f"v_permlane16_swap_b32 v{vX}, v{vY}")
        e(f"v_max_f32 v{vX}, v{vX}, v{vY}")
        e(f"v_mov_b32 v{vY}, v{vX}")
        e(f"v_permlane32_swap_b32 v{vX}, v{vY}")
        e(f"v_max_f32 v{vX}, v{vX}, v{vY}")
        e(f"v_ceil_f32 v{vX}, v{vX}")
        e(f"v_max_f32 v{vX}, v{vX}, -v{vNEGM}")
        e(f"v_add_f32 v{vY}, v{vNEGM}, v{vX}")
        e(f"v_exp_f32 v{vY}, -v{vY}")
        e(f"v_sub_f32 v{vNEGM}, 0, v{vX}")
        for r in range(4):
            e(f"v_mul_f32 v{vO+r}, v{vO+r}, v{vY}")
        e(f"v_mul_f32 v{vL0}, v{vL0}, v{vY}")
        e(f"v_mul_f32 v{vL1}, v{vL1}, v{vY}")
        for r in range(4):
            e(f"v_fma_f32 v{vT+r}, v{vS+r}, {sC}, v{vNEGM}")
        e("s_nop 1")
        e(f"s_branch {lb}")
    stubs.clear()


def init_softmax():
    e(f"v_mov_b32 v{vNEGM}, {f32(3.0e38)}")
    e(f"v_mov_b32 v{vL0}, 0")
    e(f"v_mov_b32 v{vL1}, 0")
    for r in range(4):
        e(f"v_mov_b32 v{vO+r}, 0")


def restore_nr():
    e(f"s_mov_b32 {NRK}, {KV_BYTES}")
    e(f"s_mov_b32 {NRV}, {KV_BYTES}")
    e(f"s_mov_b32 {NRC}, {WS_SIZE}")


def s_prologue():
    restore_nr()
    for i in range(RING):
        issue_S_static(i)


def canonical_S():
    q = []
    for i in range(RING):
        q += [("K", ("S", i))] * 4 + [("V", ("S", i))] * 4
    return q


def emit_pass():
    g.comment("================ pass")
    g.vmq = canonical_S()
    init_softmax()
    e(f"v_cmp_eq_u32 vcc, 0, v{vLANE}")
    e(f"v_mov_b32 v{vTKA}, 0x40000000")
    e(f"v_cndmask_b32 v{vTKA}, v{vTKA}, 0, vcc")
    e(f"s_lshl_b32 {sCNT}, {sLAYER}, 4")
    e(f"s_add_u32 {sCNT}, {sCNT}, {sHK}")
    e(f"s_lshl_b32 {sCNT}, {sCNT}, 2")
    e(f"s_add_u32 {sCNT}, {sCNT}, s3")
    e(f"s_lshl_b32 {sCNT}, {sCNT}, 8")
    e(f"s_add_u32 {sCNT}, {sCNT}, {O_CNT}")
    e(f"s_mov_b32 {sDYN0}, {16 * K0}")
    e(f"s_add_u32 {sLT}, {sSP}, {NSP}")
    e(f"s_cmp_eq_u32 {sLAYER}, 0")
    e(f"s_cselect_b32 {sDYN0}, {sDYN0}, {16 * (K0 - NLT)}")
    e(f"s_cselect_b32 {sLT}, {sLT}, {NS}")

    def nxt_of(j):
        if j < APRE:
            return j + RING
        if j < APRE + RING - D:
            return None
        return j + D

    def after_S(j):
        def f():
            nxt = nxt_of(j)
            if nxt is not None and nxt >= K0:
                issue_S_dyn(nxt)
            if j + LREQ >= K0:
                if j + LREQ == K0:
                    clr_check()
                request_ticket(j)
            if nxt is not None:
                if nxt < K0:
                    issue_S_static(nxt)
                else:
                    issue_tile_dyn(nxt)
        return f

    order = [("S", k) for k in range(APRE)]
    rl = list(range(NR_H))
    per = (NR_H + 1) // 2
    for k in (APRE, APRE + 1):
        for _ in range(per):
            if rl:
                order.append(("R", rl.pop(0)))
        order.append(("S", k))
    order.append(("X", 0))
    for k in range(APRE + 2, J0):
        order.append(("S", k))
    for kind, idx in order:
        if kind == "X":
            sk = g.newlabel("XR")
            e(f"s_cmp_lt_u32 {sROLE}, 2")
            e(f"s_cbranch_scc1 {sk}")
            for r in range(NR_H, NR_L):
                emit_visit("R", r)
            g.flush()
            g.label(sk)
            continue
        emit_visit(kind, idx, after_S(idx) if kind == "S" else None)
        if kind == "S" and idx == K0 - LREQ - 2:
            g.vm(f"buffer_load_dword v{vCLR}, off, {S_DBG}, 0 offset:64 sc1", ("clr", 0))
    L_LOOP, L_END = g.newlabel("LOOP"), g.newlabel("PEND")
    g.flush()
    q0 = list(g.vmq)
    g.label(L_LOOP)
    for p in range(RING):
        j = J0 + p
        e(f"s_cmp_ge_u32 {sTK[p]}, {NS}")
        e(f"s_cbranch_scc1 {L_END}")
        if P["DEBUG_TS"] >= 2 and p == 0:
            for k in range(7):
                TSN[TS_LOOP0 + 18 + k] = f"c0.tk<{128*(k+1)}"
                TSN[TS_LOOP0 + TS_PER + 18 + k] = f"c1.tk<{128*(k+1)}"
            e("s_memrealtime s[0:1]")
            e(f"s_lshr_b32 {sA}, {sTK[0]}, 7")
            e(f"s_add_u32 {sA}, {sA}, {sTSB}")
            e(f"s_add_u32 m0, {sA}, {TS_LOOP0 + 18}")
            e("s_waitcnt lgkmcnt(0)")
            e(f"v_writelane_b32 v{vTS}, s0, m0")
        emit_visit("S", j, after_S(j))
    g.flush()
    e(f"s_branch {L_LOOP}")

    def shift(t):
        if t is None:
            return None
        if t[0] in ("K", "V"):
            return (t[0], (t[1][0], t[1][1] - RING))
        if t[0] == "T":
            return ("T", t[1] - RING)
        return t
    q1 = [shift(t) for t in g.vmq]
    assert q0 == q1, (q0, q1)
    g.label(L_END)
    g.flush()
    g.wait_vm_all()


def clr_check():
    lp, dn = g.newlabel("CL"), g.newlabel("CD")
    g.wait_vm(("clr", 0))
    e(f"s_mov_b32 {sSPIN}, {P['SPIN']}")
    g.label(lp)
    e(f"v_readfirstlane_b32 {sA}, v{vCLR}")
    e(f"s_cmp_eq_u32 {sA}, 256")
    e(f"s_cbranch_scc1 {dn}")
    e(f"buffer_load_dword v{vCLR}, off, {S_DBG}, 0 offset:64 sc1")
    e("s_waitcnt vmcnt(0)")
    e(f"s_sub_u32 {sSPIN}, {sSPIN}, 1")
    e(f"s_cmp_lg_u32 {sSPIN}, 0")
    e(f"s_cbranch_scc1 {lp}")
    g.label(dn)


def maxu_tree(regs, dst):
    regs = list(regs)
    first = True
    while regs:
        if first:
            if len(regs) >= 3:
                e(f"v_max3_u32 v{dst}, v{regs[0]}, v{regs[1]}, v{regs[2]}"); regs = regs[3:]
            else:
                e(f"v_max_u32 v{dst}, v{regs[0]}, v{regs[1]}"); regs = regs[2:]
            first = False
        elif len(regs) >= 2:
            e(f"v_max3_u32 v{dst}, v{dst}, v{regs[0]}, v{regs[1]}"); regs = regs[2:]
        else:
            e(f"v_max_u32 v{dst}, v{dst}, v{regs[0]}"); regs = regs[1:]


def poll(loadfn, regs, tmp):
    g.flush()
    lp, dn = g.newlabel("PL"), g.newlabel("PD")
    e(f"s_mov_b32 {sSPIN}, {P['SPIN']}")
    g.label(lp)
    loadfn()
    e("s_waitcnt vmcnt(0)")
    maxu_tree(regs, tmp)
    e(f"v_cmp_eq_u32 vcc, -1, v{tmp}")
    e(f"s_cbranch_vccz {dn}")
    e(f"s_sub_u32 {sSPIN}, {sSPIN}, 1")
    e(f"s_cmp_lg_u32 {sSPIN}, 0")
    e(f"s_cbranch_scc1 {lp}")
    g.label(dn)
    g.vmq = []


def row_allreduce(regs, op, shifts=(8, 4, 2, 1)):
    for sh in shifts:
        for r in regs:
            e(f"{op}_dpp v{r}, v{r}, v{r} row_ror:{sh} row_mask:0xf bank_mask:0xf")


def cross_rows(regs, tmps, op):
    for sw in ("v_permlane16_swap_b32", "v_permlane32_swap_b32"):
        for r, t in zip(regs, tmps):
            e(f"v_mov_b32 v{t}, v{r}")
        for r, t in zip(regs, tmps):
            e(f"{sw} v{r}, v{t}")
        for r, t in zip(regs, tmps):
            e(f"{op} v{r}, v{r}, v{t}")


def wave_is(w, lab):
    e(f"s_cmp_eq_u32 s3, {w}")
    e(f"s_cbranch_scc0 {lab}")


def add_base(sreg, const):
    e(f"s_add_u32 {sreg}, {sreg}, {const}")
    e(f"s_add_u32 {sreg}, {sreg}, {sBASE}")


def layernorm_to_Y(natural):
    Dd, X = vQF, vKF
    for k in range(8):
        e(f"v_lshlrev_b32 v{X+2*k}, 16, v{Dd+k}")
        e(f"v_and_b32 v{X+2*k+1}, 0xffff0000, v{Dd+k}")
    s1a, s1b, s2a, s2b = vC0, vC0 + 1, vC0 + 2, vC0 + 3
    e(f"v_add_f32 v{s1a}, v{X}, v{X+1}")
    e(f"v_add_f32 v{s1b}, v{X+2}, v{X+3}")
    e(f"v_mul_f32 v{s2a}, v{X}, v{X}")
    e(f"v_mul_f32 v{s2b}, v{X+1}, v{X+1}")
    for k in range(4, 16):
        a = s1a if k % 2 == 0 else s1b
        e(f"v_add_f32 v{a}, v{a}, v{X+k}")
    for k in range(2, 16):
        a = s2a if k % 2 == 0 else s2b
        e(f"v_fma_f32 v{a}, v{X+k}, v{X+k}, v{a}")
    e(f"v_add_f32 v{s1a}, v{s1a}, v{s1b}")
    e(f"v_add_f32 v{s2a}, v{s2a}, v{s2b}")
    row_allreduce([s1a, s2a], "v_add_f32")
    cross_rows([s1a, s2a], [s1b, s2b], "v_add_f32")
    e(f"v_mul_f32 v{s1a}, {f32(1.0/576)}, v{s1a}")
    e(f"v_mul_f32 v{s2a}, {f32(1.0/576)}, v{s2a}")
    e(f"v_fma_f32 v{s2a}, -v{s1a}, v{s1a}, v{s2a}")
    e(f"v_max_f32 v{s2a}, 0, v{s2a}")
    e(f"v_cvt_pk_bf16_f32 v{s1b}, v{s1a}, v{s2a}")
    e(f"v_lshlrev_b32 v{s1a}, 16, v{s1b}")
    e(f"v_and_b32 v{s2a}, 0xffff0000, v{s1b}")
    e(f"v_add_f32 v{s2a}, {f32(1e-5)}, v{s2a}")
    e(f"v_cvt_pk_bf16_f32 v{s2a}, v{s2a}, v{s2a}")
    e(f"v_and_b32 v{s2a}, 0xffff0000, v{s2a}")
    e(f"v_sqrt_f32 v{s2a}, v{s2a}")
    e(f"v_cvt_pk_bf16_f32 v{s2a}, v{s2a}, v{s2a}")
    e(f"v_and_b32 v{s2a}, 0xffff0000, v{s2a}")
    e(f"v_rcp_f32 v{s2a}, v{s2a}")
    ad = vC0 + 4
    if natural:
        e(f"v_lshlrev_b32 v{ad}, 5, v{vLANE}")
        e(f"v_add_u32 v{ad}, {SCR_Y}, v{ad}")
    else:
        t = vC0 + 5
        e(f"v_lshrrev_b32 v{ad}, 2, v{vLANE}")
        e(f"v_lshlrev_b32 v{ad}, 7, v{ad}")
        e(f"v_and_b32 v{t}, 3, v{vLANE}")
        e(f"v_lshl_add_u32 v{ad}, v{t}, 3, v{ad}")
        e(f"v_add_u32 v{ad}, {SCR_Y}, v{ad}")
    for k in range(16):
        e(f"v_sub_f32 v{X+k}, v{X+k}, v{s1a}")
    for k in range(16):
        e(f"v_mul_f32 v{X+k}, v{X+k}, v{s2a}")
    for k in range(16):
        e(f"v_cvt_pk_bf16_f32 v{X+k}, v{X+k}, v{X+k}")

    def off(k):
        kk = k % 8
        if natural:
            o = kk * 4
        else:
            d, hi = kk // 2, kk % 2
            b, r = d // 2, 2 * (d % 2) + hi
            o = 4 * b + 32 * r
        return o + (2048 if k >= 8 else 0)
    for k in range(8):
        e(f"ds_write_b32 v{ad}, v{X+k} offset:{off(k)}")
    e("s_mov_b64 exec, 0xff")
    for k in range(8, 16):
        e(f"ds_write_b32 v{ad}, v{X+k} offset:{off(k)}")
    e("s_mov_b64 exec, -1")


def gather_x(srd, soff, sc1, do_poll):
    ad = 2
    e(f"v_lshlrev_b32 v{ad}, 4, v{vLANE}")
    for k in range(4, 8):
        e(f"v_mov_b32 v{vQF+k}, 0")

    def ld():
        e(f"buffer_load_dwordx4 {vr(vQF)}, v{ad}, {srd}, {soff} offen{sc1}")
        e("s_mov_b64 exec, 0xff")
        e(f"buffer_load_dwordx4 {vr(vQF+4)}, v{ad}, {srd}, {soff} offen offset:1024{sc1}")
        e("s_mov_b64 exec, -1")
    if do_poll:
        poll(ld, range(vQF, vQF + 8), vX)
    else:
        ld()


def gemv18_setup(which):
    vo, t = 1, 2
    rowb = 9216 if which == "ffn" else 8192
    e(f"v_lshrrev_b32 v{vo}, 4, v{vLANE}")
    e(f"v_lshlrev_b32 v{vo}, 1, v{vo}")
    e(f"v_bfe_u32 v{t}, v{vLANE}, 3, 1")
    e(f"v_add_u32 v{vo}, v{vo}, v{t}")
    e(f"v_mul_u32_u24 v{vo}, {rowb}, v{vo}")
    e(f"v_and_b32 v{t}, {3 if which == 'ffn' else 7}, v{vLANE}")
    e(f"v_lshl_add_u32 v{vo}, v{t}, 4, v{vo}")
    e(f"s_mul_i32 {sA}, s3, {144 * rowb}")
    if which == "ffn":
        e(f"s_lshl_b32 {sB}, {sF}, 6")
    else:
        e(f"s_lshl_b32 {sB}, {sHK}, 9")
        e(f"s_lshl_b32 {sD}, {sF}, 7")
        e(f"s_add_u32 {sB}, {sB}, {sD}")
    e(f"s_add_u32 {sA}, {sA}, {sB}")


def gemv18_loads(which, tts, tag=None):
    vo = 1
    rowb = 9216 if which == "ffn" else 8192
    if which == "ffn":
        for srd, m in ((S_WG, M_MAT0), (S_WU, M_MAT1)):
            e(f"s_mov_b64 exec, {m}")
            for tt in tts:
                e(f"s_add_u32 {sB}, {sA}, {8 * tt * rowb}")
                g.vm(f"buffer_load_dwordx4 {ar(A_WGT+4*tt)}, v{vo}, {srd}, {sB} offen nt", tag)
        e("s_mov_b64 exec, -1")
    else:
        for tt in tts:
            e(f"s_add_u32 {sB}, {sA}, {8 * tt * rowb}")
            g.vm(f"buffer_load_dwordx4 {ar(A_WGT+4*tt)}, v{vo}, {S_WQ}, {sB} offen nt", tag)


def wdown_loads(tag):
    vo, t = 1, 2
    e(f"v_lshrrev_b32 v{vo}, 4, v{vLANE}")
    e(f"v_mul_u32_u24 v{vo}, {8 * 1152}, v{vo}")
    e(f"v_and_b32 v{t}, 15, v{vLANE}")
    e(f"v_lshl_add_u32 v{vo}, v{t}, 4, v{vo}")
    e(f"s_mul_i32 {sA}, {sF}, {32 * 1152}")
    e(f"s_lshl_b32 {sB}, s3, 8")
    e(f"s_add_u32 {sB}, {sB}, {sA}")
    for k in range(8):
        e(f"s_add_u32 {sD}, {sB}, {1152 * k}")
        e(f"s_add_u32 m0, {sLW}, {LDS_WD + 1024 * k}")
        g.vm(f"buffer_load_dwordx4 v{vo}, {S_WD}, {sD} offen nt lds", tag)
    e(f"v_lshrrev_b32 v{vo}, 4, v{vLANE}")
    e(f"v_lshlrev_b32 v{vo}, 3, v{vo}")
    e(f"v_bfe_u32 v{t}, v{vLANE}, 3, 1")
    e(f"v_add_u32 v{vo}, v{vo}, v{t}")
    e(f"v_mul_u32_u24 v{vo}, 1152, v{vo}")
    e(f"v_and_b32 v{t}, 7, v{vLANE}")
    e(f"v_lshl_add_u32 v{vo}, v{t}, 4, v{vo}")
    sk = g.newlabel("WD5")
    wave_is(3, sk)
    for kk in range(4):
        e(f"s_add_u32 {sD}, {sA}, {2304 * kk + 1024}")
        e(f"buffer_load_dwordx4 {ar(A_WD5+4*kk)}, v{vo}, {S_WD}, {sD} offen nt")
    g.label(sk)


def gemv18_compute(wait_w=False):
    ad, t = vC0, vC0 + 1
    e(f"v_lshrrev_b32 v{ad}, 4, v{vLANE}")
    e(f"v_lshlrev_b32 v{ad}, 1, v{ad}")
    e(f"v_bfe_u32 v{t}, v{vLANE}, 3, 1")
    e(f"v_add_u32 v{ad}, v{ad}, v{t}")
    e(f"s_mul_i32 {sA}, s3, 144")
    e(f"v_add_u32 v{ad}, {sA}, v{ad}")
    e(f"v_lshlrev_b32 v{ad}, 2, v{ad}")
    e(f"v_add_u32 v{ad}, {SCR_Y}, v{ad}")
    wa = vC0 + 2
    e(f"v_lshrrev_b32 v{wa}, 5, v{vLANE}")
    e(f"v_lshlrev_b32 v{wa}, 8, v{wa}")
    e(f"v_bfe_u32 v{t}, v{vLANE}, 4, 1")
    e(f"v_lshl_add_u32 v{wa}, v{t}, 7, v{wa}")
    e(f"v_and_b32 v{t}, 7, v{vLANE}")
    e(f"v_lshl_add_u32 v{wa}, v{t}, 2, v{wa}")
    e(f"s_lshl_b32 {sA}, s3, 9")
    e(f"s_add_u32 {sA}, {sA}, {SCR_RED}")
    e(f"v_add_u32 v{wa}, {sA}, v{wa}")
    if wait_w:
        e("s_waitcnt vmcnt(0)")
    e("s_waitcnt lgkmcnt(0)")
    e("s_barrier")
    YV = vKF
    for k in range(9):
        e(f"ds_read2_b32 {vr(YV+2*k, 2)}, v{ad} offset0:{16*k} offset1:{16*k+8}")
    for tt in range(18):
        if tt % 2 == 0:
            e(f"s_waitcnt lgkmcnt({8 - tt // 2})")
        B = vS if tt % 2 == 0 else vT
        for r in range(4):
            e(f"v_and_b32 v{B+r}, v{YV+tt}, v{vM[r]}")
        acc = vO if tt % 2 == 0 else vPK
        c = "0" if tt < 2 else vr(acc)
        e(f"v_mfma_f32_16x16x32_bf16 {vr(acc)}, {ar(A_WGT+4*tt)}, {vr(B)}, {c}")
    for r in range(4):
        e(f"v_add_f32 v{vO+r}, v{vO+r}, v{vPK+r}")
    e(f"s_mov_b64 exec, {M_DIAG}")
    for r in range(4):
        e(f"ds_write_b32 v{wa}, v{vO+r} offset:{32*r}")
    e("s_mov_b64 exec, -1")
    e("s_waitcnt lgkmcnt(0)")
    e("s_barrier")


def red_sum8(ad, dst, between=None, nbetween=0):
    for k in range(4):
        e(f"ds_read2st64_b32 {vr(vKF+2*k, 2)}, v{ad} offset0:{2*k} offset1:{2*k+1}")
    if between:
        between()
    e(f"s_waitcnt lgkmcnt({nbetween})")
    for k in range(4):
        e(f"v_add_f32 v{vKF+2*k}, v{vKF+2*k}, v{vKF+2*k+1}")
    e(f"v_add_f32 v{vKF}, v{vKF}, v{vKF+2}")
    e(f"v_add_f32 v{vKF+4}, v{vKF+4}, v{vKF+6}")
    e(f"v_add_f32 v{dst}, v{vKF}, v{vKF+4}")


def publish_partials(base, nprod, idx_s, acc, acc4):
    vo, t = vC0, vC0 + 1
    gs = nprod * 128
    e(f"v_lshrrev_b32 v{vo}, 4, v{vLANE}")
    e(f"v_mul_u32_u24 v{vo}, {gs}, v{vo}")
    e(f"v_and_b32 v{t}, 7, v{vLANE}")
    e(f"v_lshl_add_u32 v{vo}, v{t}, 4, v{vo}")
    e(f"s_mul_i32 {sA}, s3, {4 * gs}")
    e(f"s_lshl_b32 {sB}, {idx_s}, 7")
    e(f"s_add_u32 {sA}, {sA}, {sB}")
    add_base(sA, base)
    e(f"s_mov_b64 exec, {M_N8}")
    e(f"buffer_store_dwordx4 {vr(acc)}, v{vo}, {S_WS}, {sA} offen sc1")
    sk = g.newlabel("PP")
    wave_is(3, sk)
    e(f"s_add_u32 {sA}, {sA}, {4 * gs}")
    e("s_mov_b64 exec, 0x00ff00ff")
    e(f"buffer_store_dwordx4 {vr(acc4)}, v{vo}, {S_WS}, {sA} offen sc1")
    g.label(sk)
    e("s_mov_b64 exec, -1")


def q_project(gather, startup):
    if not startup:
        sk = g.newlabel("QX")
        wave_is(0, sk)
        gather()
        layernorm_to_Y(False)
        g.flush()
        g.label(sk)
        gemv18_compute()
    else:
        gemv18_compute(wait_w=True)
    sk = g.newlabel("QS")
    wave_is(0, sk)
    ad = vC0
    e(f"v_lshlrev_b32 v{ad}, 2, v{vLANE}")
    e(f"v_add_u32 v{ad}, {SCR_RED}, v{ad}")
    red_sum8(ad, vX)
    e(f"v_mov_b32_dpp v{vY}, v{vX} quad_perm:[1,0,3,2] row_mask:0xf bank_mask:0xf")
    e(f"v_cvt_pk_bf16_f32 v{vX}, v{vX}, v{vY}")
    e(f"v_lshlrev_b32 v{ad}, 1, v{vLANE}")
    e(f"s_lshl_b32 {sA}, {sHK}, 9")
    e(f"s_lshl_b32 {sB}, {sF}, 7")
    e(f"s_add_u32 {sA}, {sA}, {sB}")
    e(f"s_add_u32 {sA}, {sA}, {QB0 if startup else O_QB}")
    e(f"s_mov_b64 exec, {M_EVEN}")
    e(f"buffer_store_dword v{vX}, v{ad}, {S_WS}, {sA} offen sc1")
    e("s_mov_b64 exec, -1")
    if startup:
        e("s_waitcnt vmcnt(0)")
        e(f"s_lshl_b32 {sA}, {sHK}, 2")
        e(f"v_mov_b32 v{ad}, {sA}")
        e(f"v_mov_b32 v{vX}, 1")
        e("s_mov_b64 exec, 1")
        e(f"buffer_atomic_add v{vX}, v{ad}, {S_DBG}, 0 offen")
        e("s_mov_b64 exec, -1")
    g.flush()
    g.label(sk)


def q_addr(ad, qbase):
    t = ad + 1
    e(f"v_bfe_u32 v{ad}, v{vLANE}, 3, 1")
    e(f"v_lshlrev_b32 v{ad}, 8, v{ad}")
    e(f"v_lshrrev_b32 v{t}, 4, v{vLANE}")
    e(f"v_lshl_add_u32 v{ad}, v{t}, 4, v{ad}")
    e(f"s_lshl_b32 {sA}, {sHK}, 9")
    e(f"s_add_u32 {sA}, {sA}, {qbase}")


def load_q_poll(qbase):
    ad = vC0
    q_addr(ad, qbase)

    def ld():
        for s in range(4):
            e(f"buffer_load_dwordx4 {vr(vQF+4*s)}, v{ad}, {S_WS}, {sA} offen offset:{64*s} sc1")
    poll(ld, range(vQF, vQF + 16), vX)


def chain():
    g.comment("================ chain")
    T = lambda n: ts(n, loop=True)
    T("pass end")
    vo, t = 1, 2
    e(f"v_lshrrev_b32 v{vo}, 4, v{vLANE}")
    e(f"v_mul_u32_u24 v{vo}, 36864, v{vo}")
    e(f"v_and_b32 v{t}, 15, v{vLANE}")
    e(f"v_lshl_add_u32 v{vo}, v{t}, 4, v{vo}")
    e(f"s_lshl_b32 {sA}, {sHK}, 8")
    e(f"s_lshr_b32 {sB}, {sSP}, 3")
    e(f"s_lshl_b32 {sB}, {sB}, 7")
    e(f"s_add_u32 {sA}, {sA}, {sB}")
    e(f"s_and_b32 {sB}, {sSP}, 7")
    e(f"s_add_u32 {sA}, {sA}, {sB}")
    e(f"s_mul_i32 {sA}, {sA}, 1152")
    e(f"s_lshl_b32 {sB}, s3, 8")
    e(f"s_add_u32 {sB}, {sB}, {sA}")
    for v in range(4):
        e(f"s_add_u32 {sD}, {sB}, {9216 * v}")
        e(f"buffer_load_dwordx4 {vr(vQF+4*v)}, v{vo}, {S_WO}, {sD} offen nt")
    sk = g.newlabel("WO")
    wave_is(3, sk)
    for v in range(4):
        e(f"s_add_u32 {sD}, {sA}, {9216 * v + 1024}")
        e(f"buffer_load_dwordx4 {vr(vKF+4*v)}, v{vo}, {S_WO}, {sD} offen nt")
    g.label(sk)
    e(f"v_add_f32 v{vL0}, v{vL0}, v{vL1}")
    cross_rows([vL0], [vX], "v_add_f32")
    e(f"v_mov_b32 v{vL1}, v{vL0}")
    e(f"v_mov_b32 v{vL0}, v{vNEGM}")
    a16, a8 = vC0, vC0 + 1
    e(f"v_lshlrev_b32 v{a16}, 4, v{vLANE}")
    e(f"v_add_u32 v{a16}, {SCR_O}, v{a16}")
    e(f"v_lshlrev_b32 v{a8}, 3, v{vLANE}")
    e(f"v_add_u32 v{a8}, {SCR_ML}, v{a8}")
    e(f"s_lshl_b32 {sA}, s3, 10")
    e(f"v_add_u32 v{vX}, {sA}, v{a16}")
    e(f"s_lshl_b32 {sA}, s3, 9")
    e(f"v_add_u32 v{vY}, {sA}, v{a8}")
    e(f"ds_write_b128 v{vX}, {vr(vO)}")
    e(f"ds_write_b64 v{vY}, {vr(vL0, 2)}")
    e("s_waitcnt lgkmcnt(0)")
    e("s_barrier")
    skA = g.newlabel("CA")
    wave_is(0, skA)
    OW = [vO, vS, vT, vPK]
    MLr = [vKF + 2 * w for w in range(4)]
    for w in range(4):
        e(f"ds_read_b64 {vr(MLr[w], 2)}, v{a8} offset:{512*w}")
    for w in range(1, 4):
        e(f"ds_read_b128 {vr(OW[w])}, v{a16} offset:{1024*w}")
    e("s_waitcnt lgkmcnt(3)")
    nm = vL0
    e(f"v_min_f32 v{nm}, v{MLr[0]}, v{MLr[1]}")
    e(f"v_min3_f32 v{nm}, v{nm}, v{MLr[2]}, v{MLr[3]}")
    for w in range(4):
        e(f"v_sub_f32 v{MLr[w]}, v{nm}, v{MLr[w]}")
    for w in range(4):
        e(f"v_exp_f32 v{MLr[w]}, v{MLr[w]}")
    e(f"v_mul_f32 v{vL1}, v{MLr[0]}, v{MLr[0]+1}")
    for w in range(1, 4):
        e(f"v_fma_f32 v{vL1}, v{MLr[w]}, v{MLr[w]+1}, v{vL1}")
    for r in range(4):
        e(f"v_mul_f32 v{vO+r}, v{vO+r}, v{MLr[0]}")
    e("s_waitcnt lgkmcnt(0)")
    for w in range(1, 4):
        for r in range(4):
            e(f"v_fma_f32 v{vO+r}, v{OW[w]+r}, v{MLr[w]}, v{vO+r}")
    e(f"v_and_b32 v{a16}, 15, v{vLANE}")
    e(f"v_lshlrev_b32 v{a8}, 7, v{a16}")
    e(f"v_lshlrev_b32 v{a16}, 10, v{a16}")
    e(f"v_lshrrev_b32 v{vX}, 4, v{vLANE}")
    e(f"v_lshl_add_u32 v{a16}, v{vX}, 4, v{a16}")
    e(f"s_lshl_b32 {sA}, {sHK}, 14")
    e(f"s_lshl_b32 {sB}, {sSP}, 6")
    e(f"s_add_u32 {sA}, {sA}, {sB}")
    add_base(sA, O_RAO)
    e(f"buffer_store_dwordx4 {vr(vO)}, v{a16}, {S_WS}, {sA} offen sc1")
    e(f"s_lshl_b32 {sA}, {sHK}, 11")
    e(f"s_lshl_b32 {sB}, {sSP}, 3")
    e(f"s_add_u32 {sA}, {sA}, {sB}")
    add_base(sA, O_RAML)
    e("s_mov_b64 exec, 0xffff")
    e(f"buffer_store_dwordx2 {vr(vL0, 2)}, v{a8}, {S_WS}, {sA} offen sc1")
    e("s_mov_b64 exec, -1")
    g.flush()
    g.label(skA)
    T("A done")
    ao, am = vC0, vC0 + 1
    e(f"v_and_b32 v{am}, 15, v{vLANE}")
    e(f"v_lshlrev_b32 v{ao}, 6, v{am}")
    e(f"v_lshlrev_b32 v{am}, 3, v{am}")
    e(f"v_lshrrev_b32 v{vX}, 4, v{vLANE}")
    e(f"v_lshl_add_u32 v{ao}, v{vX}, 4, v{ao}")
    e(f"s_lshl_b32 {sB}, s2, 7")
    add_base(sB, O_RAML)
    e(f"s_lshl_b32 {sA}, s2, 10")
    add_base(sA, O_RAO)

    def ldB():
        e(f"buffer_load_dwordx4 {vr(vO)}, v{ao}, {S_WS}, {sA} offen sc1")
        e(f"buffer_load_dwordx2 {vr(vL0, 2)}, v{am}, {S_WS}, {sB} offen sc1")
    poll(ldB, [vO, vO + 1, vO + 2, vO + 3, vL0, vL1], vX)
    T("B polled")
    e(f"v_mov_b32 v{vX}, v{vL0}")
    row_allreduce([vX], "v_min_f32")
    e(f"v_sub_f32 v{vX}, v{vX}, v{vL0}")
    e(f"v_exp_f32 v{vX}, v{vX}")
    e(f"v_mul_f32 v{vL1}, v{vL1}, v{vX}")
    for r in range(4):
        e(f"v_mul_f32 v{vO+r}, v{vO+r}, v{vX}")
    row_allreduce([vL1, vO, vO + 1, vO + 2, vO + 3], "v_add_f32")
    e(f"v_rcp_f32 v{vL1}, v{vL1}")
    for r in range(4):
        e(f"v_mul_f32 v{vO+r}, v{vO+r}, v{vL1}")
    for r in range(4):
        e(f"v_cvt_pk_bf16_f32 v{vPK+r}, v{vO+r}, v{vO+r}")
    acc4 = vC0 + 2
    skb = g.newlabel("WB")
    for v in range(4):
        B = vS if v % 2 == 0 else vT
        for r in range(4):
            e(f"v_and_b32 v{B+r}, v{vPK+v}, v{vM[r]}")
        c = "0" if v == 0 else vr(vO)
        e(f"v_mfma_f32_16x16x32_bf16 {vr(vO)}, {vr(vQF+4*v)}, {vr(B)}, {c}")
    wave_is(3, skb)
    for v in range(4):
        B = vS if v % 2 == 0 else vT
        for r in range(4):
            e(f"v_and_b32 v{B+r}, v{vPK+v}, v{vM[r]}")
        c = "0" if v == 0 else vr(acc4)
        e(f"v_mfma_f32_16x16x32_bf16 {vr(acc4)}, {vr(vKF+4*v)}, {vr(B)}, {c}")
    g.flush()
    g.label(skb)
    publish_partials(O_PB, 256, "s2", vO, acc4)
    T("PB pub")
    sk = g.newlabel("EP")
    e("s_cmp_eq_u32 s3, 0")
    e(f"s_cbranch_scc1 {sk}")
    e(f"s_cmp_eq_u32 {sROLE}, {ROLE_RED}")
    e(f"s_cbranch_scc1 {sk}")
    e(f"s_cmp_lg_u32 {sLAYER}, 0")
    e(f"s_cbranch_scc1 {sk}")
    g.vmq = []
    s_prologue()
    g.label(sk)
    g.flush()

    L_FFN, L_RED, L_Q, L_G = [g.newlabel(x) for x in ("FFN", "RED", "QP", "GG")]
    e(f"s_cmp_eq_u32 {sROLE}, {ROLE_FFN}")
    e(f"s_cbranch_scc1 {L_FFN}")
    e(f"s_cmp_eq_u32 {sROLE}, {ROLE_RED}")
    e(f"s_cbranch_scc1 {L_RED}")
    e(f"s_cmp_lg_u32 {sLAYER}, 0")
    e(f"s_cbranch_scc1 L_exit")
    e(f"s_cmp_eq_u32 {sROLE}, {ROLE_Q}")
    e(f"s_cbranch_scc1 {L_Q}")
    e(f"s_branch {L_G}")

    g.label(L_FFN)
    g.flush()
    la = vC0 + 3
    sk = g.newlabel("FX")
    wave_is(0, sk)
    e(f"s_and_b32 {sA}, {sF}, {NREP - 1}")
    e(f"s_mul_i32 {sA}, {sA}, {REPS}")
    add_base(sA, O_XB0)
    gather_x(S_WS, sA, " sc1", True)
    T("x polled")
    layernorm_to_Y(False)
    g.flush()
    g.label(sk)
    gemv18_compute()
    T("gemv done")
    ad, t = vC0, vC0 + 1
    e(f"v_lshlrev_b32 v{la}, 4, v{vLANE}")
    e(f"v_add_u32 v{la}, {sLW}, v{la}")
    e(f"v_bfe_u32 v{ad}, v{vLANE}, 3, 1")
    e(f"v_lshlrev_b32 v{ad}, 5, v{ad}")
    e(f"v_lshrrev_b32 v{t}, 4, v{vLANE}")
    e(f"v_lshl_add_u32 v{ad}, v{t}, 3, v{ad}")
    e(f"v_and_b32 v{t}, 7, v{vLANE}")
    e(f"v_add_u32 v{ad}, v{ad}, v{t}")
    e(f"v_lshlrev_b32 v{ad}, 2, v{ad}")
    e(f"v_add_u32 v{ad}, {SCR_RED}, v{ad}")

    def rd_wd():
        for k in range(4):
            e(f"ds_read_b128 {vr(vQF+4*k)}, v{la} offset:{LDS_WD + 1024*k}")
    red_sum8(ad, vX, rd_wd, 4)
    e(f"v_cvt_pk_bf16_f32 v{vX}, v{vX}, v{vX}")
    e(f"v_and_b32 v{vX}, 0xffff0000, v{vX}")
    e(f"v_mov_b32_dpp v{vY}, v{vX} row_ror:8 row_mask:0xf bank_mask:0xf")
    G, U = vS, vS + 1
    e(f"v_cndmask_b32 v{G}, v{vY}, v{vX}, {M_N8}")
    e(f"v_cndmask_b32 v{U}, v{vX}, v{vY}, {M_N8}")
    z, w = vS + 2, vS + 3
    e(f"v_mul_f32 v{z}, v{G}, v{G}")
    e(f"v_mov_b32 v{w}, {f32(0.7978845608028654)}")
    e(f"v_mul_f32 v{z}, {f32(0.7978845608028654 * 0.044715)}, v{z}")
    e(f"v_add_f32 v{z}, v{z}, v{w}")
    e(f"v_mul_f32 v{z}, v{z}, v{G}")
    e(f"v_mul_f32 v{z}, {f32(-2.0 * 1.4426950408889634)}, v{z}")
    e(f"v_exp_f32 v{z}, v{z}")
    e(f"v_add_f32 v{z}, 1.0, v{z}")
    e(f"v_rcp_f32 v{z}, v{z}")
    e(f"v_mul_f32 v{z}, v{z}, v{G}")
    e(f"v_cvt_pk_bf16_f32 v{z}, v{z}, v{z}")
    e(f"v_and_b32 v{z}, 0xffff0000, v{z}")
    e(f"v_mul_f32 v{z}, v{z}, v{U}")
    e(f"v_cvt_pk_bf16_f32 v{vPK}, v{z}, v{z}")
    acc4 = vC0 + 4
    for k in range(8):
        B = vKF + 4 * (k % 4)
        for r in range(4):
            e(f"v_and_b32_dpp v{B+r}, v{vPK}, v{vM[r]} row_newbcast:{k} row_mask:0xf bank_mask:0xf")
        e(f"s_waitcnt lgkmcnt({3 if k < 4 else 7 - k})")
        c = "0" if k == 0 else vr(vO)
        e(f"v_mfma_f32_16x16x32_bf16 {vr(vO)}, {vr(vQF+4*(k%4))}, {vr(B)}, {c}")
        if k < 4:
            e("s_nop 3")
            e(f"ds_read_b128 {vr(vQF+4*k)}, v{la} offset:{LDS_WD + 1024*(k+4)}")
    skb = g.newlabel("DB")
    wave_is(3, skb)
    H2 = vS
    for kk in range(4):
        e(f"v_mov_b32_dpp v{H2}, v{vPK} row_newbcast:{2*kk} row_mask:0xf bank_mask:0x3")
        e(f"v_mov_b32_dpp v{H2}, v{vPK} row_newbcast:{2*kk+1} row_mask:0xf bank_mask:0xc")
        B = vKF + 4 * kk
        for r in range(4):
            e(f"v_and_b32 v{B+r}, v{H2}, v{vM[r]}")
        c = "0" if kk == 0 else vr(acc4)
        e(f"v_mfma_f32_16x16x32_bf16 {vr(acc4)}, {ar(A_WD5+4*kk)}, {vr(B)}, {c}")
    for r in range(4):
        e(f"v_mov_b32_dpp v{vT+r}, v{acc4+r} row_ror:8 row_mask:0xf bank_mask:0xf")
    for r in range(4):
        e(f"v_mov_b32 v{vKF+r}, v{vT+r}")
    for r in range(4):
        e(f"v_permlane32_swap_b32 v{vKF+r}, v{vT+r}")
    for r in range(4):
        e(f"v_add_f32 v{acc4+r}, v{acc4+r}, v{vT+r}")
    g.flush()
    g.label(skb)
    publish_partials(O_PD, 144, sF, vO, acc4)
    T("PD pub")
    e(f"s_cmp_lg_u32 {sLAYER}, 0")
    e(f"s_cbranch_scc1 L_exit")
    e(f"s_branch {L_G}")

    g.label(L_RED)
    g.flush()
    xs = vXS
    for stage in range(2):
        nprod = 256 if stage == 0 else 144
        per = nprod // 4
        nl = (per + 7) // 8
        ad = vC0
        e(f"v_lshlrev_b32 v{ad}, 4, v{vLANE}")
        e(f"s_mul_i32 {sA}, {sF}, {nprod * 128}")
        e(f"s_mul_i32 {sB}, s3, {per * 128}")
        e(f"s_add_u32 {sA}, {sA}, {sB}")
        add_base(sA, O_PB if stage == 0 else O_PD)
        if stage == 1:
            for r in range(4):
                e(f"v_mov_b32 v{vKF+16+r}, 0")
        e(f"s_add_u32 {sB}, {sA}, 4096")

        def ldR():
            for k in range(nl):
                if stage == 1 and k == 4:
                    e("s_mov_b64 exec, 0xffffffff")
                so, off = (sA, 1024 * k) if k < 4 else (sB, 1024 * (k - 4))
                e(f"buffer_load_dwordx4 {vr(vKF+4*k)}, v{ad}, {S_WS}, {so} offen offset:{off} sc1")
            if stage == 1:
                e("s_mov_b64 exec, -1")
        poll(ldR, range(vKF, vKF + 4 * nl), vX)
        T("C polled" if stage == 0 else "E polled")
        regs = [vKF + 4 * k for k in range(nl)]
        while len(regs) > 1:
            nxt = []
            for a in range(0, len(regs) - 1, 2):
                for r in range(4):
                    e(f"v_add_f32 v{regs[a]+r}, v{regs[a]+r}, v{regs[a+1]+r}")
                nxt.append(regs[a])
            if len(regs) % 2:
                nxt.append(regs[-1])
            regs = nxt
        R4 = [vKF + r for r in range(4)]
        row_allreduce(R4, "v_add_f32", shifts=(8,))
        cross_rows(R4, [vKF + 4 + r for r in range(4)], "v_add_f32")
        e(f"v_and_b32 v{ad}, 7, v{vLANE}")
        e(f"v_lshlrev_b32 v{ad}, 4, v{ad}")
        e(f"v_add_u32 v{ad}, {SCR_R2 + 0}, v{ad}")
        e(f"s_lshl_b32 {sA}, s3, 7")
        e(f"v_add_u32 v{vY}, {sA}, v{ad}")
        e("s_mov_b64 exec, 0xff")
        e(f"ds_write_b128 v{vY}, {vr(vKF)}")
        e("s_mov_b64 exec, -1")
        e("s_waitcnt lgkmcnt(0)")
        e("s_barrier")
        for w in range(4):
            e(f"ds_read_b128 {vr(vKF+4*w)}, v{ad} offset:{128*w}")
        e("s_waitcnt lgkmcnt(0)")
        for r in range(4):
            e(f"v_add_f32 v{vKF+r}, v{vKF+r}, v{vKF+4+r}")
            e(f"v_add_f32 v{vKF+8+r}, v{vKF+8+r}, v{vKF+12+r}")
        for r in range(4):
            e(f"v_add_f32 v{vKF+r}, v{vKF+r}, v{vKF+8+r}")
        if stage == 0:
            e("s_barrier")
        e(f"v_cvt_pk_bf16_f32 v{vS}, v{vKF}, v{vKF+1}")
        e(f"v_cvt_pk_bf16_f32 v{vS+1}, v{vKF+2}, v{vKF+3}")
        for r in range(4):
            if r % 2 == 0:
                e(f"v_lshlrev_b32 v{vT+r}, 16, v{vS+r//2}")
            else:
                e(f"v_and_b32 v{vT+r}, 0xffff0000, v{vS+r//2}")
        for r in range(4):
            e(f"v_add_f32 v{vT+r}, v{vT+r}, v{xs+r}")
        e(f"v_cvt_pk_bf16_f32 v{vS}, v{vT}, v{vT+1}")
        e(f"v_cvt_pk_bf16_f32 v{vS+1}, v{vT+2}, v{vT+3}")
        for r in range(4):
            if r % 2 == 0:
                e(f"v_lshlrev_b32 v{xs+r}, 16, v{vS+r//2}")
            else:
                e(f"v_and_b32 v{xs+r}, 0xffff0000, v{vS+r//2}")

        def pub_x(off):
            e(f"v_lshrrev_b32 v{ad}, 3, v{vLANE}")
            e(f"v_mul_u32_u24 v{ad}, {REPS}, v{ad}")
            e(f"v_and_b32 v{vY}, 7, v{vLANE}")
            e(f"v_lshl_add_u32 v{ad}, v{vY}, 3, v{ad}")
            e(f"s_mul_i32 {sA}, s3, {8 * REPS}")
            e(f"s_lshl_b32 {sB}, {sF}, 6")
            e(f"s_add_u32 {sA}, {sA}, {sB}")
            add_base(sA, off)
            e(f"buffer_store_dwordx2 {vr(vS, 2)}, v{ad}, {S_WS}, {sA} offen sc1")
        if stage == 0:
            pub_x(O_XB0)
            T("C pub")
        else:
            sk, sk2 = g.newlabel("OUT"), g.newlabel("OUT2")
            e(f"s_cmp_lg_u32 {sLAYER}, 0")
            e(f"s_cbranch_scc1 {sk}")
            pub_x(O_XB1)
            T("E pub")
            e(f"s_branch {L_G}")
            g.label(sk)
            g.flush()
            wave_is(0, sk2)
            e(f"s_lshl_b32 {sA}, {sF}, 6")
            e(f"v_lshlrev_b32 v{ad}, 1, v{vLANE}")
            for r in range(4):
                e(f"v_lshrrev_b32 v{vT+r}, 16, v{xs+r}")
            e("s_mov_b64 exec, 0xff")
            for r in range(4):
                e(f"buffer_store_short v{vT+r}, v{ad}, {S_OUT}, {sA} offen offset:{16*r}")
            e("s_mov_b64 exec, -1")
            g.label(sk2)
            T("E pub")
            e("s_branch L_exit")

    g.label(L_Q)
    g.flush()

    def gq():
        e(f"s_lshl_b32 {sA}, {sHK}, 2")
        e(f"s_add_u32 {sA}, {sA}, {sF}")
        e(f"s_and_b32 {sA}, {sA}, {NREP - 1}")
        e(f"s_mul_i32 {sA}, {sA}, {REPS}")
        e(f"s_add_u32 {sA}, {sA}, {O_XB1}")
        gather_x(S_WS, sA, " sc1", True)
        T("x2 polled")
    q_project(gq, False)
    T("q pub")
    g.label(L_G)
    g.flush()
    sk, w0, j = g.newlabel("GP"), g.newlabel("W0"), g.newlabel("WJ")
    e("s_cmp_eq_u32 s3, 0")
    e(f"s_cbranch_scc1 {w0}")
    e(f"s_cmp_eq_u32 {sROLE}, {ROLE_RED}")
    e(f"s_cbranch_scc0 {j}")
    g.vmq = []
    s_prologue()
    e(f"s_branch {j}")
    g.label(w0)
    g.flush()
    g.vmq = []
    s_prologue()
    load_q_poll(O_QB)
    ad = vC0 + 2
    e(f"v_lshlrev_b32 v{ad}, 4, v{vLANE}")
    e(f"v_add_u32 v{ad}, {SCR_Q}, v{ad}")
    for s_ in range(4):
        e(f"ds_write_b128 v{ad}, {vr(vQF+4*s_)} offset:{1024*s_}")
    e("s_waitcnt lgkmcnt(0)")
    g.label(j)
    g.flush()
    e("s_barrier")
    ad = vC0 + 2
    e(f"v_lshlrev_b32 v{ad}, 4, v{vLANE}")
    e(f"v_add_u32 v{ad}, {SCR_Q}, v{ad}")
    for s_ in range(4):
        e(f"ds_read_b128 {vr(vQF+4*s_)}, v{ad} offset:{1024*s_}")
    e(f"s_mov_b32 {sLAYER}, 1")
    e(f"s_mov_b32 {sBASE}, {BLK}")
    e("s_waitcnt lgkmcnt(0)")
    T("q ready")
    e(f"s_mov_b32 {sTSB}, {TS_PER}")


class RPhase:
    def __init__(s):
        s.ringc = 0
        s.slot_of = {}
        s.busy = {}

    def clone(s):
        c = RPhase()
        c.ringc, c.slot_of, c.busy = s.ringc, dict(s.slot_of), dict(s.busy)
        return c

    def issue(s, u):
        kind, idx = u
        if kind == "R":
            e(f"s_add_u32 {sT}, {sKVR}, {idx * 4096}")
            if HK[idx][0] == "l":
                slot = HK[idx][1]
            else:
                slot = s.ringc % RING
                s.ringc += 1
                assert slot not in s.busy, (u, slot, s.busy)
                s.busy[slot] = u
            s.slot_of[u] = slot
            issue_tile(sT, slot * 4096, hreg(HV[idx]), u)
        elif kind == "S":
            assert idx % RING not in s.busy, (u, s.busy)
            issue_S_static(idx)
        elif kind == "WG":
            gemv18_setup("ffn")
            gemv18_loads("ffn", range(9 * idx, 9 * idx + 9), ("K", u))
        elif kind == "WD":
            wdown_loads(("K", u))
        else:
            raise ValueError(u)

    def complete(s, u):
        kind, idx = u
        g.wait_vm(("K", u))
        via = kind == "R" and HK[idx][0] != "l"
        if via:
            kreg = hreg(HK[idx])
            for s_ in range(4):
                e(f"ds_read_b128 {kreg(s_)}, v{vDSK[s_]} offset:{s.slot_of[u] * 4096}")
        if kind in ("R", "S"):
            g.wait_vm(("V", u))
        if via:
            e("s_waitcnt lgkmcnt(0)")
            del s.busy[s.slot_of[u]]


def main():
    hdr = []
    ref = open(os.path.join(os.path.dirname(__file__), "..", "cdna_kernels", NAME + ".s.ref")).read().split("\n")
    for ln in ref:
        if ln.startswith("; @launch"):
            hdr.append(f"; @launch grid=(256,1,1) block=(256,1,1) lds={LDS_BYTES}")
        elif ln.startswith(";"):
            hdr.append(ln)
        else:
            break
    g.raw("\n".join(hdr))
    g.raw('.amdgcn_target "amdgcn-amd-amdhsa--gfx950"')
    g.raw(".text")
    g.raw(f".globl {NAME}_kernel")
    g.raw(".p2align 8")
    g.raw(f".type {NAME}_kernel,@function")
    g.raw(f"{NAME}_kernel:")
    e("s_cmp_ge_u32 s2, 256")
    e("s_cbranch_scc1 L_quit")
    srds = [(4, 8, KV_BYTES), (8, 16, KV_BYTES), (12, 24, 576 * 8192), (16, 32, 4096 * 1152),
            (20, 48, 576 * 9216), (24, 56, 576 * 9216), (28, 64, 4608 * 1152), (32, 88, WS_SIZE),
            (36, 80, 256), (40, 0, 1152), (44, 72, 1152), (48, 88, WS_SIZE)]
    for s, off, size in srds:
        e(f"s_load_dwordx2 s[{s}:{s+1}], s[0:1], {off}")
    for s, off, size in srds:
        e(f"s_mov_b32 s{s+2}, {size}")
        e(f"s_mov_b32 s{s+3}, 0x00020000")
    if P["DEBUG_TS"]:
        e(f"v_mov_b32 v{vTS}, 0")
    e(f"s_mov_b32 {sTSB}, 0")
    e(f"s_mov_b32 {sLAYER}, 0")
    e(f"s_mov_b32 {sBASE}, 0")
    e("v_lshrrev_b32 v1, 6, v0")
    e("v_and_b32 v0, 63, v0")
    e("v_readfirstlane_b32 s3, v1")
    e(f"s_lshr_b32 {sHK}, s2, 4")
    e(f"s_and_b32 {sSP}, s2, 15")
    e(f"s_lshl_b32 {sA}, {sHK}, 24")
    e(f"s_lshl_b32 {sB}, {sSP}, 2")
    e(f"s_add_u32 {sB}, {sB}, s3")
    e(f"s_mul_i32 {sD}, {sB}, {NR_H * 4096}")
    e(f"s_sub_u32 {sT}, {sB}, {NHEAVY * 4}")
    e(f"s_mul_i32 {sT}, {sT}, {NR_L * 4096}")
    e(f"s_add_u32 {sT}, {sT}, {NHEAVY * 4 * NR_H * 4096}")
    e(f"s_cmp_lt_u32 {sSP}, {NHEAVY}")
    e(f"s_cselect_b32 {sB}, {sD}, {sT}")
    e(f"s_add_u32 {sKVR}, {sA}, {sB}")
    e(f"s_mul_i32 {sB}, s3, {NS * 4096}")
    e(f"s_add_u32 {sKVS}, {sA}, {sB}")
    e(f"s_add_u32 {sKVS}, {sKVS}, {R_TOT * 4096}")
    e(f"s_mul_i32 {sLW}, s3, {WAVE_LDS}")
    e(f"s_mov_b32 {sC}, {f32(128 ** -0.5 * 1.4426950408889634)}")
    e(f"s_mov_b32 {sTHR}, {f32(8.0)}")
    lr = g.newlabel("RL")
    e(f"s_mov_b32 {sROLE}, {ROLE_FFN}")
    e(f"s_mul_i32 {sF}, {sHK}, 9")
    e(f"s_add_u32 {sF}, {sF}, {sSP}")
    e(f"s_cmp_lt_u32 {sSP}, 9")
    e(f"s_cbranch_scc1 {lr}")
    e(f"s_mov_b32 {sROLE}, {ROLE_Q}")
    e(f"s_sub_u32 {sF}, {sSP}, 9")
    e(f"s_cmp_lt_u32 {sSP}, 13")
    e(f"s_cbranch_scc1 {lr}")
    e(f"s_mov_b32 {sROLE}, {ROLE_RED}")
    e(f"s_mov_b32 {sF}, {sHK}")
    e(f"s_cmp_eq_u32 {sSP}, 13")
    e(f"s_cbranch_scc1 {lr}")
    e(f"s_add_u32 {sF}, {sHK}, 16")
    e(f"s_cmp_eq_u32 {sSP}, 14")
    e(f"s_cselect_b32 {sA}, 1, 0")
    e(f"s_cmp_lt_u32 {sHK}, 2")
    e(f"s_cselect_b32 {sA}, {sA}, 0")
    e(f"s_cmp_eq_u32 {sA}, 1")
    e(f"s_cbranch_scc1 {lr}")
    e(f"s_mov_b32 {sROLE}, {ROLE_NONE}")
    g.label(lr)
    for m, val in ((66, 0x00FF00FF00FF00FF), (68, 0xFF00FF0000FF00FF), (70, 0x0F0F0F0F0F0F0F0F), (72, 0xF0F0F0F0F0F0F0F0), (74, 0x5555555555555555)):
        e(f"s_mov_b32 s{m}, 0x{val & 0xffffffff:08x}")
        e(f"s_mov_b32 s{m+1}, 0x{val >> 32:08x}")
    e("v_lshrrev_b32 v1, 4, v0")
    e("v_and_b32 v2, 15, v0")
    e("v_xor_b32 v38, v1, v2")
    for t in range(4):
        e(f"v_xor_b32 v{vX}, {4*t}, v38")
        e(f"v_lshlrev_b32 v{vX}, 4, v{vX}")
        e(f"v_lshl_add_u32 v{vKOFF[t]}, v1, 8, v{vX}")
        e(f"v_lshl_add_u32 v{vDSK[t]}, v2, 8, v{vX}")
        e(f"v_add_u32 v{vDSK[t]}, {sLW}, v{vDSK[t]}")
    e(f"v_lshlrev_b32 v{vVOFF}, 10, v1")
    e(f"v_lshl_add_u32 v{vVOFF}, v2, 4, v{vVOFF}")
    if P["EXP"] & 2:
        e(f"v_lshlrev_b32 v{vVOFF}, 4, v0")
    if P["EXP"] & 4:
        for t in range(4):
            e(f"v_lshlrev_b32 v{vKOFF[t]}, 4, v0")
    e("v_and_b32 v38, 1, v0")
    e("v_cmp_eq_u32 vcc, 1, v38")
    e(f"v_mov_b32 v{vX}, 0x0000ffff")
    e(f"v_mov_b32 v{vY}, 0xffff0000")
    e(f"v_cndmask_b32 v{vX}, v{vX}, v{vY}, vcc")
    e("v_bfe_u32 v38, v0, 1, 2")
    for r in range(4):
        e(f"v_cmp_eq_u32 vcc, {r}, v38")
        e(f"v_cndmask_b32 v{vM[r]}, 0, v{vX}, vcc")
    e("s_waitcnt lgkmcnt(0)")
    ts("start")
    L_NQ, L_ST = g.newlabel("NQ"), g.newlabel("ST")
    e(f"s_cmp_eq_u32 {sROLE}, {ROLE_Q}")
    e(f"s_cbranch_scc0 {L_NQ}")
    sk = g.newlabel("X0")
    wave_is(0, sk)
    gather_x(S_X, "0", "", False)
    g.label(sk)
    gemv18_setup("q")
    gemv18_loads("q", range(18))
    g.label(L_NQ)
    e(f"v_mov_b32 v{vS}, -1")
    for r in range(1, 4):
        e(f"v_mov_b32 v{vS+r}, -1")
    e(f"v_lshlrev_b32 v{vX}, 4, v0")
    e(f"s_mul_i32 {sA}, s2, {CLR_PER_WG}")
    e(f"s_lshl_b32 {sB}, s3, 10")
    e(f"s_add_u32 {sA}, {sA}, {sB}")
    e(f"buffer_store_dwordx4 {vr(vS)}, v{vX}, {S_WS}, {sA} offen sc1")
    e(f"s_add_u32 {sA}, {sA}, 4096")
    e(f"buffer_store_dwordx4 {vr(vS)}, v{vX}, {S_WS}, {sA} offen sc1")
    sk = g.newlabel("CLR")
    e("s_cmp_lt_u32 s3, 3")
    e(f"s_cbranch_scc0 {sk}")
    e(f"s_add_u32 {sA}, {sA}, 4096")
    sk2 = g.newlabel("CLRH")
    e("s_cmp_eq_u32 s3, 2")
    e(f"s_cbranch_scc0 {sk2}")
    e("s_mov_b64 exec, 0xffffffff")
    g.label(sk2)
    e(f"buffer_store_dwordx4 {vr(vS)}, v{vX}, {S_WS}, {sA} offen sc1")
    e("s_mov_b64 exec, -1")
    g.label(sk)
    sk = g.newlabel("CZ")
    e("s_cmp_eq_u32 s3, 3")
    e(f"s_cbranch_scc0 {sk}")
    e("s_cmp_lt_u32 s2, 128")
    e(f"s_cbranch_scc0 {sk}")
    e(f"s_lshl_b32 {sA}, s2, 8")
    e(f"s_add_u32 {sA}, {sA}, {O_CNT}")
    e(f"v_mov_b32 v{vY}, 0")
    e("s_mov_b64 exec, 1")
    e(f"buffer_store_dword v{vY}, v{vY}, {S_WS}, {sA} offen sc1")
    e("s_mov_b64 exec, -1")
    g.label(sk)
    sk = g.newlabel("RX")
    e(f"s_cmp_eq_u32 {sROLE}, {ROLE_RED}")
    e(f"s_cbranch_scc0 {sk}")
    e(f"s_lshl_b32 {sA}, {sF}, 6")
    e(f"v_and_b32 v{vY}, 7, v0")
    e(f"v_lshlrev_b32 v{vY}, 1, v{vY}")
    for r in range(4):
        e(f"buffer_load_ushort v{vXS+r}, v{vY}, {S_X}, {sA} offen offset:{16*r}")
    g.label(sk)
    e(f"s_cmp_eq_u32 {sROLE}, {ROLE_Q}")
    e(f"s_cbranch_scc0 {L_ST}")
    sk = g.newlabel("LN0")
    wave_is(0, sk)
    e("s_waitcnt vmcnt(0)")
    layernorm_to_Y(True)
    g.flush()
    g.label(sk)
    q_project(None, True)
    ts("q pub")
    g.label(L_ST)
    g.flush()
    common = [("R", r) for r in range(NR_H) if HK[r][0] != "l"] + [("R", r) for r in range(NR_H) if HK[r][0] == "l"]
    Sun = [("S", i) for i in range(RING)]
    paths = {
        "light": common + [("R", NR_H + 2), ("R", NR_H + 3), ("R", NR_H), ("R", NR_H + 1)] + Sun,
        "ffn": common + [("WG", 0), ("WG", 1), ("WD", 0)] + Sun,
        "q": common + Sun,
    }
    restore_nr()
    g.vmq = [("st", 0)]
    rp = RPhase()
    for k in range(DR):
        rp.issue(common[k])
    kfork = len(common) - DR
    K_CLR = 3
    assert K_CLR < kfork
    for k in range(kfork):
        rp.complete(common[k])
        if P["DEBUG_TS"] >= 2 and k in (0, 2, 5):
            ts(f"unit {k}")
        if k == K_CLR:
            e("s_barrier")
            sk = g.newlabel("CS")
            wave_is(0, sk)
            e(f"v_mov_b32 v{vX}, 64")
            e(f"v_mov_b32 v{vY}, 1")
            e("s_mov_b64 exec, 1")
            e(f"buffer_atomic_add v{vY}, v{vX}, {S_DBG}, 0 offen")
            e("s_mov_b64 exec, -1")
            g.label(sk)
            for r in range(4):
                e(f"v_lshlrev_b32 v{vXS+r}, 16, v{vXS+r}")
            ts("clr sig")
        rp.issue(common[k + DR])
    L_JOIN = g.newlabel("RJ")
    labs = {n: g.newlabel("RP") for n in paths}
    e(f"s_cmp_eq_u32 {sROLE}, {ROLE_FFN}")
    e(f"s_cbranch_scc1 {labs['ffn']}")
    e(f"s_cmp_eq_u32 {sROLE}, {ROLE_Q}")
    e(f"s_cbranch_scc1 {labs['q']}")
    g.flush()
    vm0 = list(g.vmq)
    for n in ("light", "ffn", "q"):
        units = paths[n]
        g.label(labs[n])
        g.flush()
        g.vmq = list(vm0)
        r2 = rp.clone()
        KF_FLAG, KF_Q = kfork, kfork + 2
        for k in range(kfork, len(units)):
            u = units[k]
            if k + DR < len(units) or u[0] != "S":
                r2.complete(u)
            if k == KF_FLAG:
                e(f"s_lshl_b32 {sA}, {sHK}, 2")
                e(f"v_mov_b32 v{vX}, {sA}")
                g.vm(f"buffer_load_dword v{vY}, v{vX}, {S_DBG}, 0 offen sc1", ("flag", 0))
            if k == KF_Q:
                g.wait_vm(("flag", 0))
                lp, dn = g.newlabel("QF"), g.newlabel("QD")
                e(f"s_mov_b32 {sSPIN}, {P['SPIN']}")
                g.label(lp)
                e(f"v_cmp_ne_u32 vcc, 4, v{vY}")
                e(f"s_cbranch_vccz {dn}")
                e(f"buffer_load_dword v{vY}, v{vX}, {S_DBG}, 0 offen sc1")
                e("s_waitcnt vmcnt(0)")
                e(f"s_sub_u32 {sSPIN}, {sSPIN}, 1")
                e(f"s_cmp_lg_u32 {sSPIN}, 0")
                e(f"s_cbranch_scc1 {lp}")
                g.label(dn)
                ts("flag ok")
                q_addr(vC0, QB0)
                for s in range(4):
                    g.vm(f"buffer_load_dwordx4 {vr(vQF+4*s)}, v{vC0}, {S_WS}, {sA} offen offset:{64*s} sc1", ("q", 0))
            if k + DR < len(units):
                r2.issue(units[k + DR])
        g.wait_vm(("q", 0))
        g.flush()
        if n != "q":
            e(f"s_branch {L_JOIN}")
    g.label(L_JOIN)
    g.flush()
    ts("R loaded")
    g.label("L_pass")
    emit_pass()
    chain()
    e("s_branch L_pass")
    g.label("L_exit")
    if P["DEBUG_TS"]:
        ts("end")
        e(f"s_lshl_b32 {sA}, s2, 2")
        e(f"s_add_u32 {sA}, {sA}, s3")
        e(f"s_lshl_b32 {sA}, {sA}, 8")
        e(f"s_add_u32 {sA}, {sA}, {WS_TS}")
        e("s_mov_b64 exec, -1")
        e(f"v_lshlrev_b32 v1, 2, v{vLANE}")
        e(f"buffer_store_dword v{vTS}, v1, {S_WS}, {sA} offen")
    g.label("L_quit")
    e("s_endpgm")
    emit_stubs()
    g.raw(".section .rodata,\"a\"")
    g.raw(".p2align 6")
    g.raw(f".amdhsa_kernel {NAME}_kernel")
    g.raw("  .amdhsa_next_free_vgpr 512")
    g.raw("  .amdhsa_next_free_sgpr 102")
    g.raw("  .amdhsa_accum_offset 256")
    g.raw("  .amdhsa_group_segment_fixed_size 0")
    g.raw("  .amdhsa_kernarg_size 96")
    g.raw("  .amdhsa_user_sgpr_count 2")
    g.raw("  .amdhsa_user_sgpr_kernarg_segment_ptr 1")
    g.raw("  .amdhsa_system_sgpr_workgroup_id_x 1")
    g.raw(".end_amdhsa_kernel")
    out = os.environ.get("OUT", os.path.join(os.path.dirname(__file__), "..", "cdna_kernels", NAME + ".s"))
    txt = g.text()
    if P["DEBUG_TS"]:
        txt = txt.replace("; @launch", "; TSNAMES " + json.dumps(TSN) + "\n; @launch", 1)
    open(out, "w").write(txt)
    print("instructions:", g.count, "bytes:", len(txt), "NR", NR_H, NR_L, "NS", NS, "J0", J0, "K0", K0)


main()
```

```python
import sys, os, struct, json
sys.path.insert(0, os.path.dirname(__file__))
from asmlib import Asm

NAME = "interleave_layers__gqa_block_cached__glu_gated_geglu__decode"

P = dict(
    RING=5,
    DEBUG_TS=0,
    SPIN=200000,
    D=2,
    LREQ=4,
    NREP=32,
    DR=3,
    POL=1,
    PFS=1,
    PF=0,
    APRE=3,
    REV=0,
    EXP=0,
)
for a in sys.argv[1:]:
    if "=" in a:
        k, v = a.split("=")
        assert k in P, k
        P[k] = int(v)
RING, D, LREQ, DR = P["RING"], P["D"], P["LREQ"], P["DR"]
NKL = 9 - RING
NR_L = 18 - RING
NR_H = NR_L - 4
NHEAVY = 13
R_TOT = 4 * (NHEAVY * NR_H + (16 - NHEAVY) * NR_L)
NS = (4096 - R_TOT) // 4
assert R_TOT + 4 * NS == 4096
APRE = P["APRE"]
PF = P["PF"]
J0 = RING * ((APRE + RING - D + 1 + RING - 1) // RING)
while J0 < 2 * RING:
    J0 += RING
K0 = J0 + D
assert D <= RING and LREQ - D < RING and LREQ >= D + 1 and K0 - LREQ >= RING


def f32(x):
    return "0x%08x" % struct.unpack("<I", struct.pack("<f", x))[0]


WAVE_LDS = 9 * 4096
SCR = 4 * WAVE_LDS
SCR_O, SCR_ML, SCR_Y, SCR_RED = SCR, SCR + 4096, SCR + 6144, SCR + 8704
SCR_Q = SCR + 10752
SCR_R2 = SCR + 14848
LDS_BYTES = 163840
assert SCR_RED + 2048 <= SCR_Q and SCR_Q + 4096 <= SCR_R2 and SCR_R2 + 512 <= LDS_BYTES
LDS_WD = (RING + NKL - 2) * 4096

REPS = 2048
NREP = P["NREP"]
O_PB = 0x0
O_PD = 0x90000
O_RAO = 0xE4000
O_RAML = 0x124000
O_QB = 0x12C000
O_XB0 = 0x130000
O_XB1 = 0x140000
BLK = 0x150000
assert NREP * REPS <= 0x10000
CLEAR_BYTES = 2 * BLK
CLR_PER_WG = CLEAR_BYTES // 256
assert CLR_PER_WG == 10752
QB0 = 0x300000
O_CNT = 0x310000
WS_TS = 0x400000
WS_SIZE = 0x800000

(S_K, S_V, S_WQ, S_WO, S_WG, S_WU, S_WD, S_WS, S_DBG, S_X, S_OUT, S_CNT) = [f"s[{4*k+4}:{4*k+7}]" for k in range(12)]
NRK, NRV, NRC = "s6", "s10", "s50"
(sKVR, sKVS, sT, sC, sTHR, sHK, sSP, sLW, sA, sB, sD, sF, sSPIN, sCNT) = [f"s{52+k}" for k in range(14)]
M_N8, M_DIAG, M_MAT0, M_MAT1, M_EVEN = [f"s[{66+2*k}:{67+2*k}]" for k in range(5)]
sTK = [f"s{76+k}" for k in range(5)]
sROLE, sBASE, sLAYER, sTSB, sMUL = "s81", "s82", "s83", "s84", "s85"
KV_BYTES = 0x10000000
ROLE_FFN, ROLE_Q, ROLE_RED, ROLE_NONE = 0, 1, 2, 3

vLANE = 0
vTS = 3
vKOFF = [4, 5, 6, 7]
vVOFF = 8
vDSK = [9, 10, 11, 12]
vM = [13, 14, 15, 16]
vNEGM, vL0, vL1 = 17, 18, 19
vO, vS, vT, vPK = 20, 24, 28, 32
vX, vY = 36, 37
vC0 = 38
vTK = [38, 39, 40, 41, 42]
vCLR = vTK[RING - 1]
vTKA = 43
vXS = 44
vKF, vQF = 48, 64

A_slots = [("a", 16 * k) for k in range(RING, 16)]
V_slots = [("v", 80 + 16 * k) for k in range(11)]
TOP6 = A_slots[-6:]
_rest = V_slots + A_slots[:-6]
HK, HV = {}, {}
for r in range(NR_H):
    if r < NKL - 2:
        HK[r] = ("l", RING + r)
    else:
        HK[r] = _rest.pop(0)
for r in range(NR_H):
    HV[r] = _rest.pop(0)
assert not _rest
HK[NR_H], HK[NR_H + 1] = ("l", RING + NKL - 2), ("l", RING + NKL - 1)
HK[NR_H + 2], HK[NR_H + 3] = TOP6[4], TOP6[5]
for k in range(4):
    HV[NR_H + k] = TOP6[k]
A_WGT = TOP6[0][1]
A_WD5 = A_WGT + 72


def vr(b, n=4):
    return f"v[{b}:{b+n-1}]"


def ar(b, n=4):
    return f"a[{b}:{b+n-1}]"


def hreg(home):
    kind, base = home
    assert kind in "va"
    return lambda k: f"{kind}[{base+4*k}:{base+4*k+3}]"


g = Asm()
e = g.e
stubs = []
TSN = [""] * 64
TS_LOOP0, TS_PER = 8, 27
_ts_start, _ts_loop = [], []


def ts(name, loop=False):
    if not P["DEBUG_TS"]:
        return
    lst = _ts_loop if loop else _ts_start
    if name not in lst:
        lst.append(name)
    k = lst.index(name)
    e("s_memrealtime s[0:1]")
    if loop:
        assert k < 18
        TSN[TS_LOOP0 + k] = "c0." + name
        TSN[TS_LOOP0 + TS_PER + k] = "c1." + name
        e(f"s_add_u32 m0, {sTSB}, {TS_LOOP0 + k}")
        e("s_waitcnt lgkmcnt(0)")
        e(f"v_writelane_b32 v{vTS}, s0, m0")
    else:
        if name == "end":
            k = 63
        assert k < TS_LOOP0 or k == 63
        TSN[k] = name
        e("s_waitcnt lgkmcnt(0)")
        e(f"v_writelane_b32 v{vTS}, s0, {k}")


def ring_v(slot):
    return hreg(("a", 16 * slot))


POLS = ["", " nt", " sc1", " sc0 sc1", " sc1 nt", " sc0 nt", " sc0", " sc0 sc1 nt"]


def issue_tile(soff, klds, vreg, tag, nt=None):
    if nt is None:
        nt = POLS[P["POL"]] if tag[0] == "S" else " nt"
    e(f"s_add_u32 m0, {sLW}, {klds}")
    for t in range(4):
        g.vm(f"buffer_load_dwordx4 v{vKOFF[t]}, {S_K}, {soff} offen offset:{1024*t}{nt} lds", ("K", tag))
    for v in range(4):
        g.vm(f"buffer_load_dwordx4 {vreg(v)}, v{vVOFF}, {S_V}, {soff} offen offset:{(1024 if P['EXP'] & 2 else 256)*v}{nt}", ("V", tag))


def tile_off(slot):
    e(f"s_mul_i32 {sT}, {sTK[slot]}, {sMUL}")
    e(f"s_add_u32 {sT}, {sT}, {sKVS}")


def issue_S_static(i):
    slot = i % RING
    e(f"s_add_u32 {sTK[slot]}, {sSP}, {16 * i}")
    tile_off(slot)
    issue_tile(sT, slot * 4096, ring_v(slot), ("S", i))


def request_ticket(j):
    r = vTK[j % RING]
    e(f"v_mov_b32 v{r}, 1")
    g.vm(f"buffer_atomic_add v{r}, v{vTKA}, {S_CNT}, {sCNT} offen sc0", ("T", j + LREQ))


def issue_S_dyn(i):
    slot = i % RING
    r = vTK[(i - LREQ) % RING]
    g.wait_vm(("T", i))
    e(f"v_readfirstlane_b32 {sTK[slot]}, v{r}")
    e(f"s_add_u32 {sTK[slot]}, {sTK[slot]}, {16 * K0}")
    e(f"s_cmp_lt_u32 {sTK[slot]}, {NS}")
    ok = g.newlabel("TK")
    e(f"s_cbranch_scc1 {ok}")
    e(f"s_mov_b32 {NRC}, 0")
    e(f"s_mov_b32 {NRK}, 0")
    e(f"s_mov_b32 {NRV}, 0")
    e(f"s_mov_b32 {sTK[slot]}, {NS}")
    g.label(ok)
    tile_off(slot)
    e(f"s_cmp_lt_u32 {sTK[slot]}, {NS}")
    e(f"s_cselect_b32 {sT}, {sT}, 0")


def issue_tile_dyn(i):
    slot = i % RING
    issue_tile(sT, slot * 4096, ring_v(slot), ("S", i))


def emit_visit(kind, idx, after=None):
    g.comment(f"visit {kind}{idx}")
    if kind == "S":
        slot = idx % RING
        khome, vreg = ("l", slot), ring_v(slot)
        g.wait_vm(("K", ("S", idx)))
    else:
        khome, vreg = HK[idx], hreg(HV[idx])
    kread = khome[0] == "l"
    kreg = hreg(("v", vKF)) if kread else hreg(khome)
    if kind == "S" and (P["EXP"] & 1) and idx >= 1:
        g.wait_vm(("V", ("S", idx)))
        if after:
            after()
        return
    if kread:
        for s in range(4):
            e(f"ds_read_b128 {vr(vKF+4*s)}, v{vDSK[s]} offset:{khome[1] * 4096}")
    for s in range(4):
        if kread:
            e(f"s_waitcnt lgkmcnt({3-s})")
        c = "0" if s == 0 else vr(vS)
        e(f"v_mfma_f32_16x16x32_bf16 {vr(vS)}, {kreg(s)}, {vr(vQF+4*s)}, {c}")
    for r in range(4):
        e(f"v_fma_f32 v{vT+r}, v{vS+r}, {sC}, v{vNEGM}")
    e(f"v_max3_f32 v{vX}, v{vT}, v{vT+1}, v{vT+2}")
    e(f"v_max_f32 v{vX}, v{vX}, v{vT+3}")
    e(f"v_cmp_lt_f32 vcc, {sTHR}, v{vX}")
    ls, lb = g.newlabel("RS"), g.newlabel("RB")
    e(f"s_cbranch_vccnz {ls}")
    stubs.append((ls, lb, g.snapshot()))
    g.label(lb)
    for r in range(4):
        e(f"v_exp_f32 v{vT+r}, v{vT+r}")
    for r in range(4):
        e(f"v_cvt_pk_bf16_f32 v{vPK+r}, v{vT+r}, v{vT+r}")
        e(f"v_add_f32 v{vL0 + (r & 1)}, v{vL0 + (r & 1)}, v{vT+r}")
    if kind == "S":
        g.wait_vm(("V", ("S", idx)))

    def ands(v):
        for r in range(4):
            e(f"v_and_b32 v{vKF+4*v+r}, v{vPK+v}, v{vM[r]}")

    def pv(v):
        e(f"v_mfma_f32_16x16x32_bf16 {vr(vO)}, {vreg(v)}, {vr(vKF+4*v)}, {vr(vO)}")
    ands(0); ands(1); pv(0); ands(2); pv(1); ands(3); pv(2); pv(3)
    if after:
        after()


def emit_stubs():
    for ls, lb, snap in stubs:
        g.restore(snap)
        g.label(ls)
        e(f"v_max3_f32 v{vX}, v{vS}, v{vS+1}, v{vS+2}")
        e(f"v_max_f32 v{vX}, v{vX}, v{vS+3}")
        e(f"v_mul_f32 v{vX}, {sC}, v{vX}")
        e(f"v_mov_b32 v{vY}, v{vX}")
        e(f"v_permlane16_swap_b32 v{vX}, v{vY}")
        e(f"v_max_f32 v{vX}, v{vX}, v{vY}")
        e(f"v_mov_b32 v{vY}, v{vX}")
        e(f"v_permlane32_swap_b32 v{vX}, v{vY}")
        e(f"v_max_f32 v{vX}, v{vX}, v{vY}")
        e(f"v_ceil_f32 v{vX}, v{vX}")
        e(f"v_max_f32 v{vX}, v{vX}, -v{vNEGM}")
        e(f"v_add_f32 v{vY}, v{vNEGM}, v{vX}")
        e(f"v_exp_f32 v{vY}, -v{vY}")
        e(f"v_sub_f32 v{vNEGM}, 0, v{vX}")
        for r in range(4):
            e(f"v_mul_f32 v{vO+r}, v{vO+r}, v{vY}")
        e(f"v_mul_f32 v{vL0}, v{vL0}, v{vY}")
        e(f"v_mul_f32 v{vL1}, v{vL1}, v{vY}")
        for r in range(4):
            e(f"v_fma_f32 v{vT+r}, v{vS+r}, {sC}, v{vNEGM}")
        e("s_nop 1")
        e(f"s_branch {lb}")
    stubs.clear()


def init_softmax():
    e(f"v_mov_b32 v{vNEGM}, {f32(3.0e38)}")
    e(f"v_mov_b32 v{vL0}, 0")
    e(f"v_mov_b32 v{vL1}, 0")
    for r in range(4):
        e(f"v_mov_b32 v{vO+r}, 0")


def restore_nr():
    e(f"s_mov_b32 {NRK}, {KV_BYTES}")
    e(f"s_mov_b32 {NRV}, {KV_BYTES}")
    e(f"s_mov_b32 {NRC}, {WS_SIZE}")


def s_prologue():
    restore_nr()
    for i in range(RING):
        issue_S_static(i)


def touch_L2():
    if not PF:
        return
    e(f"v_lshlrev_b32 v2, 7, v{vLANE}")
    e("s_mov_b64 exec, 0xffffffff")
    for i in range(RING, RING + PF):
        e(f"s_add_u32 {sA}, {sSP}, {16 * i}")
        e(f"s_mul_i32 {sA}, {sA}, {sMUL}")
        e(f"s_add_u32 {sA}, {sA}, {sKVS}")
        e(f"buffer_load_dword v1, v2, {S_K}, {sA} offen")
        e(f"buffer_load_dword v1, v2, {S_V}, {sA} offen")
    e("s_mov_b64 exec, -1")


def chain_prefetch():
    g.vmq = []
    s_prologue()
    touch_L2()
    g.vmq = []


def canonical_S():
    q = []
    for i in range(RING):
        q += [("K", ("S", i))] * 4 + [("V", ("S", i))] * 4
    return q


def emit_pass():
    g.comment("================ pass")
    g.vmq = canonical_S()
    init_softmax()
    e(f"v_cmp_eq_u32 vcc, 0, v{vLANE}")
    e(f"v_mov_b32 v{vTKA}, 0x40000000")
    e(f"v_cndmask_b32 v{vTKA}, v{vTKA}, 0, vcc")
    e(f"s_lshl_b32 {sCNT}, {sLAYER}, 4")
    e(f"s_add_u32 {sCNT}, {sCNT}, {sHK}")
    e(f"s_lshl_b32 {sCNT}, {sCNT}, 2")
    e(f"s_add_u32 {sCNT}, {sCNT}, s3")
    e(f"s_lshl_b32 {sCNT}, {sCNT}, 8")
    e(f"s_add_u32 {sCNT}, {sCNT}, {O_CNT}")

    def nxt_of(j):
        if j < APRE:
            return j + RING
        if j < APRE + RING - D:
            return None
        return j + D

    def after_S(j):
        def f():
            nxt = nxt_of(j)
            if nxt is not None and nxt >= K0:
                issue_S_dyn(nxt)
            if j + LREQ >= K0:
                if j + LREQ == K0:
                    clr_check()
                request_ticket(j)
            if nxt is not None:
                if nxt < K0:
                    issue_S_static(nxt)
                else:
                    issue_tile_dyn(nxt)
        return f

    order = [("S", k) for k in range(APRE)]
    rl = list(range(NR_H))
    per = (NR_H + 1) // 2
    for k in (APRE, APRE + 1):
        for _ in range(per):
            if rl:
                order.append(("R", rl.pop(0)))
        order.append(("S", k))
    order.append(("X", 0))
    for k in range(APRE + 2, J0):
        order.append(("S", k))
    for kind, idx in order:
        if kind == "X":
            sk = g.newlabel("XR")
            e(f"s_cmp_lt_u32 {sROLE}, 2")
            e(f"s_cbranch_scc1 {sk}")
            for r in range(NR_H, NR_L):
                emit_visit("R", r)
            g.flush()
            g.label(sk)
            continue
        emit_visit(kind, idx, after_S(idx) if kind == "S" else None)
        if kind == "S" and idx == K0 - LREQ - 2:
            g.vm(f"buffer_load_dword v{vCLR}, off, {S_DBG}, 0 offset:64 sc1", ("clr", 0))
    L_LOOP, L_END = g.newlabel("LOOP"), g.newlabel("PEND")
    g.flush()
    q0 = list(g.vmq)
    g.label(L_LOOP)
    for p in range(RING):
        j = J0 + p
        e(f"s_cmp_ge_u32 {sTK[p]}, {NS}")
        e(f"s_cbranch_scc1 {L_END}")
        if P["DEBUG_TS"] >= 2 and p == 0:
            for k in range(7):
                TSN[TS_LOOP0 + 18 + k] = f"c0.tk<{128*(k+1)}"
                TSN[TS_LOOP0 + TS_PER + 18 + k] = f"c1.tk<{128*(k+1)}"
            e("s_memrealtime s[0:1]")
            e(f"s_lshr_b32 {sA}, {sTK[0]}, 7")
            e(f"s_add_u32 {sA}, {sA}, {sTSB}")
            e(f"s_add_u32 m0, {sA}, {TS_LOOP0 + 18}")
            e("s_waitcnt lgkmcnt(0)")
            e(f"v_writelane_b32 v{vTS}, s0, m0")
        emit_visit("S", j, after_S(j))
    g.flush()
    e(f"s_branch {L_LOOP}")

    def shift(t):
        if t is None:
            return None
        if t[0] in ("K", "V"):
            return (t[0], (t[1][0], t[1][1] - RING))
        if t[0] == "T":
            return ("T", t[1] - RING)
        return t
    q1 = [shift(t) for t in g.vmq]
    assert q0 == q1, (q0, q1)
    g.label(L_END)
    g.flush()
    g.wait_vm_all()


def clr_check():
    lp, dn = g.newlabel("CL"), g.newlabel("CD")
    g.wait_vm(("clr", 0))
    e(f"s_mov_b32 {sSPIN}, {P['SPIN']}")
    g.label(lp)
    e(f"v_readfirstlane_b32 {sA}, v{vCLR}")
    e(f"s_cmp_eq_u32 {sA}, 256")
    e(f"s_cbranch_scc1 {dn}")
    e(f"buffer_load_dword v{vCLR}, off, {S_DBG}, 0 offset:64 sc1")
    e("s_waitcnt vmcnt(0)")
    e(f"s_sub_u32 {sSPIN}, {sSPIN}, 1")
    e(f"s_cmp_lg_u32 {sSPIN}, 0")
    e(f"s_cbranch_scc1 {lp}")
    g.label(dn)


def maxu_tree(regs, dst):
    regs = list(regs)
    first = True
    while regs:
        if first:
            if len(regs) >= 3:
                e(f"v_max3_u32 v{dst}, v{regs[0]}, v{regs[1]}, v{regs[2]}"); regs = regs[3:]
            else:
                e(f"v_max_u32 v{dst}, v{regs[0]}, v{regs[1]}"); regs = regs[2:]
            first = False
        elif len(regs) >= 2:
            e(f"v_max3_u32 v{dst}, v{dst}, v{regs[0]}, v{regs[1]}"); regs = regs[2:]
        else:
            e(f"v_max_u32 v{dst}, v{dst}, v{regs[0]}"); regs = regs[1:]


def poll(loadfn, regs, tmp):
    g.flush()
    lp, dn = g.newlabel("PL"), g.newlabel("PD")
    e(f"s_mov_b32 {sSPIN}, {P['SPIN']}")
    g.label(lp)
    loadfn()
    e("s_waitcnt vmcnt(0)")
    maxu_tree(regs, tmp)
    e(f"v_cmp_eq_u32 vcc, -1, v{tmp}")
    e(f"s_cbranch_vccz {dn}")
    e(f"s_sub_u32 {sSPIN}, {sSPIN}, 1")
    e(f"s_cmp_lg_u32 {sSPIN}, 0")
    e(f"s_cbranch_scc1 {lp}")
    g.label(dn)
    g.vmq = []


def row_allreduce(regs, op, shifts=(8, 4, 2, 1)):
    for sh in shifts:
        for r in regs:
            e(f"{op}_dpp v{r}, v{r}, v{r} row_ror:{sh} row_mask:0xf bank_mask:0xf")


def cross_rows(regs, tmps, op):
    for sw in ("v_permlane16_swap_b32", "v_permlane32_swap_b32"):
        for r, t in zip(regs, tmps):
            e(f"v_mov_b32 v{t}, v{r}")
        for r, t in zip(regs, tmps):
            e(f"{sw} v{r}, v{t}")
        for r, t in zip(regs, tmps):
            e(f"{op} v{r}, v{r}, v{t}")


def wave_is(w, lab):
    e(f"s_cmp_eq_u32 s3, {w}")
    e(f"s_cbranch_scc0 {lab}")


def add_base(sreg, const):
    e(f"s_add_u32 {sreg}, {sreg}, {const}")
    e(f"s_add_u32 {sreg}, {sreg}, {sBASE}")


def layernorm_to_Y(natural):
    Dd, X = vQF, vKF
    for k in range(8):
        e(f"v_lshlrev_b32 v{X+2*k}, 16, v{Dd+k}")
        e(f"v_and_b32 v{X+2*k+1}, 0xffff0000, v{Dd+k}")
    s1a, s1b, s2a, s2b = vC0, vC0 + 1, vC0 + 2, vC0 + 3
    e(f"v_add_f32 v{s1a}, v{X}, v{X+1}")
    e(f"v_add_f32 v{s1b}, v{X+2}, v{X+3}")
    e(f"v_mul_f32 v{s2a}, v{X}, v{X}")
    e(f"v_mul_f32 v{s2b}, v{X+1}, v{X+1}")
    for k in range(4, 16):
        a = s1a if k % 2 == 0 else s1b
        e(f"v_add_f32 v{a}, v{a}, v{X+k}")
    for k in range(2, 16):
        a = s2a if k % 2 == 0 else s2b
        e(f"v_fma_f32 v{a}, v{X+k}, v{X+k}, v{a}")
    e(f"v_add_f32 v{s1a}, v{s1a}, v{s1b}")
    e(f"v_add_f32 v{s2a}, v{s2a}, v{s2b}")
    row_allreduce([s1a, s2a], "v_add_f32")
    cross_rows([s1a, s2a], [s1b, s2b], "v_add_f32")
    e(f"v_mul_f32 v{s1a}, {f32(1.0/576)}, v{s1a}")
    e(f"v_mul_f32 v{s2a}, {f32(1.0/576)}, v{s2a}")
    e(f"v_fma_f32 v{s2a}, -v{s1a}, v{s1a}, v{s2a}")
    e(f"v_max_f32 v{s2a}, 0, v{s2a}")
    e(f"v_cvt_pk_bf16_f32 v{s1b}, v{s1a}, v{s2a}")
    e(f"v_lshlrev_b32 v{s1a}, 16, v{s1b}")
    e(f"v_and_b32 v{s2a}, 0xffff0000, v{s1b}")
    e(f"v_add_f32 v{s2a}, {f32(1e-5)}, v{s2a}")
    e(f"v_cvt_pk_bf16_f32 v{s2a}, v{s2a}, v{s2a}")
    e(f"v_and_b32 v{s2a}, 0xffff0000, v{s2a}")
    e(f"v_sqrt_f32 v{s2a}, v{s2a}")
    e(f"v_cvt_pk_bf16_f32 v{s2a}, v{s2a}, v{s2a}")
    e(f"v_and_b32 v{s2a}, 0xffff0000, v{s2a}")
    e(f"v_rcp_f32 v{s2a}, v{s2a}")
    ad = vC0 + 4
    if natural:
        e(f"v_lshlrev_b32 v{ad}, 5, v{vLANE}")
        e(f"v_add_u32 v{ad}, {SCR_Y}, v{ad}")
    else:
        t = vC0 + 5
        e(f"v_lshrrev_b32 v{ad}, 2, v{vLANE}")
        e(f"v_lshlrev_b32 v{ad}, 7, v{ad}")
        e(f"v_and_b32 v{t}, 3, v{vLANE}")
        e(f"v_lshl_add_u32 v{ad}, v{t}, 3, v{ad}")
        e(f"v_add_u32 v{ad}, {SCR_Y}, v{ad}")
    for k in range(16):
        e(f"v_sub_f32 v{X+k}, v{X+k}, v{s1a}")
    for k in range(16):
        e(f"v_mul_f32 v{X+k}, v{X+k}, v{s2a}")
    for k in range(16):
        e(f"v_cvt_pk_bf16_f32 v{X+k}, v{X+k}, v{X+k}")

    def off(k):
        kk = k % 8
        if natural:
            o = kk * 4
        else:
            d, hi = kk // 2, kk % 2
            b, r = d // 2, 2 * (d % 2) + hi
            o = 4 * b + 32 * r
        return o + (2048 if k >= 8 else 0)
    for k in range(8):
        e(f"ds_write_b32 v{ad}, v{X+k} offset:{off(k)}")
    e("s_mov_b64 exec, 0xff")
    for k in range(8, 16):
        e(f"ds_write_b32 v{ad}, v{X+k} offset:{off(k)}")
    e("s_mov_b64 exec, -1")


def gather_x(srd, soff, sc1, do_poll):
    ad = 2
    e(f"v_lshlrev_b32 v{ad}, 4, v{vLANE}")
    for k in range(4, 8):
        e(f"v_mov_b32 v{vQF+k}, 0")

    def ld():
        e(f"buffer_load_dwordx4 {vr(vQF)}, v{ad}, {srd}, {soff} offen{sc1}")
        e("s_mov_b64 exec, 0xff")
        e(f"buffer_load_dwordx4 {vr(vQF+4)}, v{ad}, {srd}, {soff} offen offset:1024{sc1}")
        e("s_mov_b64 exec, -1")
    if do_poll:
        poll(ld, range(vQF, vQF + 8), vX)
    else:
        ld()


def gemv18_setup(which):
    vo, t = 1, 2
    rowb = 9216 if which == "ffn" else 8192
    e(f"v_lshrrev_b32 v{vo}, 4, v{vLANE}")
    e(f"v_lshlrev_b32 v{vo}, 1, v{vo}")
    e(f"v_bfe_u32 v{t}, v{vLANE}, 3, 1")
    e(f"v_add_u32 v{vo}, v{vo}, v{t}")
    e(f"v_mul_u32_u24 v{vo}, {rowb}, v{vo}")
    e(f"v_and_b32 v{t}, {3 if which == 'ffn' else 7}, v{vLANE}")
    e(f"v_lshl_add_u32 v{vo}, v{t}, 4, v{vo}")
    e(f"s_mul_i32 {sA}, s3, {144 * rowb}")
    if which == "ffn":
        e(f"s_lshl_b32 {sB}, {sF}, 6")
    else:
        e(f"s_lshl_b32 {sB}, {sHK}, 9")
        e(f"s_lshl_b32 {sD}, {sF}, 7")
        e(f"s_add_u32 {sB}, {sB}, {sD}")
    e(f"s_add_u32 {sA}, {sA}, {sB}")


def gemv18_loads(which, tts, tag=None):
    vo = 1
    rowb = 9216 if which == "ffn" else 8192
    if which == "ffn":
        for srd, m in ((S_WG, M_MAT0), (S_WU, M_MAT1)):
            e(f"s_mov_b64 exec, {m}")
            for tt in tts:
                e(f"s_add_u32 {sB}, {sA}, {8 * tt * rowb}")
                g.vm(f"buffer_load_dwordx4 {ar(A_WGT+4*tt)}, v{vo}, {srd}, {sB} offen nt", tag)
        e("s_mov_b64 exec, -1")
    else:
        for tt in tts:
            e(f"s_add_u32 {sB}, {sA}, {8 * tt * rowb}")
            g.vm(f"buffer_load_dwordx4 {ar(A_WGT+4*tt)}, v{vo}, {S_WQ}, {sB} offen nt", tag)


def wdown_loads(tag):
    vo, t = 1, 2
    e(f"v_lshrrev_b32 v{vo}, 4, v{vLANE}")
    e(f"v_mul_u32_u24 v{vo}, {8 * 1152}, v{vo}")
    e(f"v_and_b32 v{t}, 15, v{vLANE}")
    e(f"v_lshl_add_u32 v{vo}, v{t}, 4, v{vo}")
    e(f"s_mul_i32 {sA}, {sF}, {32 * 1152}")
    e(f"s_lshl_b32 {sB}, s3, 8")
    e(f"s_add_u32 {sB}, {sB}, {sA}")
    for k in range(8):
        e(f"s_add_u32 {sD}, {sB}, {1152 * k}")
        e(f"s_add_u32 m0, {sLW}, {LDS_WD + 1024 * k}")
        g.vm(f"buffer_load_dwordx4 v{vo}, {S_WD}, {sD} offen nt lds", tag)
    e(f"v_lshrrev_b32 v{vo}, 4, v{vLANE}")
    e(f"v_lshlrev_b32 v{vo}, 3, v{vo}")
    e(f"v_bfe_u32 v{t}, v{vLANE}, 3, 1")
    e(f"v_add_u32 v{vo}, v{vo}, v{t}")
    e(f"v_mul_u32_u24 v{vo}, 1152, v{vo}")
    e(f"v_and_b32 v{t}, 7, v{vLANE}")
    e(f"v_lshl_add_u32 v{vo}, v{t}, 4, v{vo}")
    sk = g.newlabel("WD5")
    wave_is(3, sk)
    for kk in range(4):
        e(f"s_add_u32 {sD}, {sA}, {2304 * kk + 1024}")
        e(f"buffer_load_dwordx4 {ar(A_WD5+4*kk)}, v{vo}, {S_WD}, {sD} offen nt")
    g.label(sk)


def gemv18_compute(wait_w=False):
    ad, t = vC0, vC0 + 1
    e(f"v_lshrrev_b32 v{ad}, 4, v{vLANE}")
    e(f"v_lshlrev_b32 v{ad}, 1, v{ad}")
    e(f"v_bfe_u32 v{t}, v{vLANE}, 3, 1")
    e(f"v_add_u32 v{ad}, v{ad}, v{t}")
    e(f"s_mul_i32 {sA}, s3, 144")
    e(f"v_add_u32 v{ad}, {sA}, v{ad}")
    e(f"v_lshlrev_b32 v{ad}, 2, v{ad}")
    e(f"v_add_u32 v{ad}, {SCR_Y}, v{ad}")
    wa = vC0 + 2
    e(f"v_lshrrev_b32 v{wa}, 5, v{vLANE}")
    e(f"v_lshlrev_b32 v{wa}, 8, v{wa}")
    e(f"v_bfe_u32 v{t}, v{vLANE}, 4, 1")
    e(f"v_lshl_add_u32 v{wa}, v{t}, 7, v{wa}")
    e(f"v_and_b32 v{t}, 7, v{vLANE}")
    e(f"v_lshl_add_u32 v{wa}, v{t}, 2, v{wa}")
    e(f"s_lshl_b32 {sA}, s3, 9")
    e(f"s_add_u32 {sA}, {sA}, {SCR_RED}")
    e(f"v_add_u32 v{wa}, {sA}, v{wa}")
    if wait_w:
        e("s_waitcnt vmcnt(0)")
    e("s_waitcnt lgkmcnt(0)")
    e("s_barrier")
    YV = vKF
    for k in range(9):
        e(f"ds_read2_b32 {vr(YV+2*k, 2)}, v{ad} offset0:{16*k} offset1:{16*k+8}")
    for tt in range(18):
        if tt % 2 == 0:
            e(f"s_waitcnt lgkmcnt({8 - tt // 2})")
        B = vS if tt % 2 == 0 else vT
        for r in range(4):
            e(f"v_and_b32 v{B+r}, v{YV+tt}, v{vM[r]}")
        acc = vO if tt % 2 == 0 else vPK
        c = "0" if tt < 2 else vr(acc)
        e(f"v_mfma_f32_16x16x32_bf16 {vr(acc)}, {ar(A_WGT+4*tt)}, {vr(B)}, {c}")
    for r in range(4):
        e(f"v_add_f32 v{vO+r}, v{vO+r}, v{vPK+r}")
    e(f"s_mov_b64 exec, {M_DIAG}")
    for r in range(4):
        e(f"ds_write_b32 v{wa}, v{vO+r} offset:{32*r}")
    e("s_mov_b64 exec, -1")
    e("s_waitcnt lgkmcnt(0)")
    e("s_barrier")


def red_sum8(ad, dst, between=None, nbetween=0):
    for k in range(4):
        e(f"ds_read2st64_b32 {vr(vKF+2*k, 2)}, v{ad} offset0:{2*k} offset1:{2*k+1}")
    if between:
        between()
    e(f"s_waitcnt lgkmcnt({nbetween})")
    for k in range(4):
        e(f"v_add_f32 v{vKF+2*k}, v{vKF+2*k}, v{vKF+2*k+1}")
    e(f"v_add_f32 v{vKF}, v{vKF}, v{vKF+2}")
    e(f"v_add_f32 v{vKF+4}, v{vKF+4}, v{vKF+6}")
    e(f"v_add_f32 v{dst}, v{vKF}, v{vKF+4}")


def publish_partials(base, nprod, idx_s, acc, acc4):
    vo, t = vC0, vC0 + 1
    gs = nprod * 128
    e(f"v_lshrrev_b32 v{vo}, 4, v{vLANE}")
    e(f"v_mul_u32_u24 v{vo}, {gs}, v{vo}")
    e(f"v_and_b32 v{t}, 7, v{vLANE}")
    e(f"v_lshl_add_u32 v{vo}, v{t}, 4, v{vo}")
    e(f"s_mul_i32 {sA}, s3, {4 * gs}")
    e(f"s_lshl_b32 {sB}, {idx_s}, 7")
    e(f"s_add_u32 {sA}, {sA}, {sB}")
    add_base(sA, base)
    e(f"s_mov_b64 exec, {M_N8}")
    e(f"buffer_store_dwordx4 {vr(acc)}, v{vo}, {S_WS}, {sA} offen sc1")
    sk = g.newlabel("PP")
    wave_is(3, sk)
    e(f"s_add_u32 {sA}, {sA}, {4 * gs}")
    e("s_mov_b64 exec, 0x00ff00ff")
    e(f"buffer_store_dwordx4 {vr(acc4)}, v{vo}, {S_WS}, {sA} offen sc1")
    g.label(sk)
    e("s_mov_b64 exec, -1")


def q_project(gather, startup):
    if not startup:
        sk = g.newlabel("QX")
        wave_is(0, sk)
        gather()
        layernorm_to_Y(False)
        g.flush()
        g.label(sk)
        gemv18_compute()
    else:
        gemv18_compute(wait_w=True)
    sk = g.newlabel("QS")
    wave_is(0, sk)
    ad = vC0
    e(f"v_lshlrev_b32 v{ad}, 2, v{vLANE}")
    e(f"v_add_u32 v{ad}, {SCR_RED}, v{ad}")
    red_sum8(ad, vX)
    e(f"v_mov_b32_dpp v{vY}, v{vX} quad_perm:[1,0,3,2] row_mask:0xf bank_mask:0xf")
    e(f"v_cvt_pk_bf16_f32 v{vX}, v{vX}, v{vY}")
    e(f"v_lshlrev_b32 v{ad}, 1, v{vLANE}")
    e(f"s_lshl_b32 {sA}, {sHK}, 9")
    e(f"s_lshl_b32 {sB}, {sF}, 7")
    e(f"s_add_u32 {sA}, {sA}, {sB}")
    e(f"s_add_u32 {sA}, {sA}, {QB0 if startup else O_QB}")
    e(f"s_mov_b64 exec, {M_EVEN}")
    e(f"buffer_store_dword v{vX}, v{ad}, {S_WS}, {sA} offen sc1")
    e("s_mov_b64 exec, -1")
    if startup:
        e("s_waitcnt vmcnt(0)")
        e(f"s_lshl_b32 {sA}, {sHK}, 2")
        e(f"v_mov_b32 v{ad}, {sA}")
        e(f"v_mov_b32 v{vX}, 1")
        e("s_mov_b64 exec, 1")
        e(f"buffer_atomic_add v{vX}, v{ad}, {S_DBG}, 0 offen")
        e("s_mov_b64 exec, -1")
    g.flush()
    g.label(sk)


def q_addr(ad, qbase):
    t = ad + 1
    e(f"v_bfe_u32 v{ad}, v{vLANE}, 3, 1")
    e(f"v_lshlrev_b32 v{ad}, 8, v{ad}")
    e(f"v_lshrrev_b32 v{t}, 4, v{vLANE}")
    e(f"v_lshl_add_u32 v{ad}, v{t}, 4, v{ad}")
    e(f"s_lshl_b32 {sA}, {sHK}, 9")
    e(f"s_add_u32 {sA}, {sA}, {qbase}")


def load_q_poll(qbase):
    ad = vC0
    q_addr(ad, qbase)

    def ld():
        for s in range(4):
            e(f"buffer_load_dwordx4 {vr(vQF+4*s)}, v{ad}, {S_WS}, {sA} offen offset:{64*s} sc1")
    poll(ld, range(vQF, vQF + 16), vX)


def chain():
    g.comment("================ chain")
    T = lambda n: ts(n, loop=True)
    T("pass end")
    if P["REV"]:
        e(f"s_mov_b32 {sMUL}, -4096")
        e(f"s_add_u32 {sKVS}, {sKVS}, {(NS - 1) * 4096}")
    vo, t = 1, 2
    e(f"v_lshrrev_b32 v{vo}, 4, v{vLANE}")
    e(f"v_mul_u32_u24 v{vo}, 36864, v{vo}")
    e(f"v_and_b32 v{t}, 15, v{vLANE}")
    e(f"v_lshl_add_u32 v{vo}, v{t}, 4, v{vo}")
    e(f"s_lshl_b32 {sA}, {sHK}, 8")
    e(f"s_lshr_b32 {sB}, {sSP}, 3")
    e(f"s_lshl_b32 {sB}, {sB}, 7")
    e(f"s_add_u32 {sA}, {sA}, {sB}")
    e(f"s_and_b32 {sB}, {sSP}, 7")
    e(f"s_add_u32 {sA}, {sA}, {sB}")
    e(f"s_mul_i32 {sA}, {sA}, 1152")
    e(f"s_lshl_b32 {sB}, s3, 8")
    e(f"s_add_u32 {sB}, {sB}, {sA}")
    for v in range(4):
        e(f"s_add_u32 {sD}, {sB}, {9216 * v}")
        e(f"buffer_load_dwordx4 {vr(vQF+4*v)}, v{vo}, {S_WO}, {sD} offen nt")
    sk = g.newlabel("WO")
    wave_is(3, sk)
    for v in range(4):
        e(f"s_add_u32 {sD}, {sA}, {9216 * v + 1024}")
        e(f"buffer_load_dwordx4 {vr(vKF+4*v)}, v{vo}, {S_WO}, {sD} offen nt")
    g.label(sk)
    e(f"v_add_f32 v{vL0}, v{vL0}, v{vL1}")
    cross_rows([vL0], [vX], "v_add_f32")
    e(f"v_mov_b32 v{vL1}, v{vL0}")
    e(f"v_mov_b32 v{vL0}, v{vNEGM}")
    a16, a8 = vC0, vC0 + 1
    e(f"v_lshlrev_b32 v{a16}, 4, v{vLANE}")
    e(f"v_add_u32 v{a16}, {SCR_O}, v{a16}")
    e(f"v_lshlrev_b32 v{a8}, 3, v{vLANE}")
    e(f"v_add_u32 v{a8}, {SCR_ML}, v{a8}")
    e(f"s_lshl_b32 {sA}, s3, 10")
    e(f"v_add_u32 v{vX}, {sA}, v{a16}")
    e(f"s_lshl_b32 {sA}, s3, 9")
    e(f"v_add_u32 v{vY}, {sA}, v{a8}")
    e(f"ds_write_b128 v{vX}, {vr(vO)}")
    e(f"ds_write_b64 v{vY}, {vr(vL0, 2)}")
    e("s_waitcnt lgkmcnt(0)")
    e("s_barrier")
    skA = g.newlabel("CA")
    wave_is(0, skA)
    OW = [vO, vS, vT, vPK]
    MLr = [vKF + 2 * w for w in range(4)]
    for w in range(4):
        e(f"ds_read_b64 {vr(MLr[w], 2)}, v{a8} offset:{512*w}")
    for w in range(1, 4):
        e(f"ds_read_b128 {vr(OW[w])}, v{a16} offset:{1024*w}")
    e("s_waitcnt lgkmcnt(3)")
    nm = vL0
    e(f"v_min_f32 v{nm}, v{MLr[0]}, v{MLr[1]}")
    e(f"v_min3_f32 v{nm}, v{nm}, v{MLr[2]}, v{MLr[3]}")
    for w in range(4):
        e(f"v_sub_f32 v{MLr[w]}, v{nm}, v{MLr[w]}")
    for w in range(4):
        e(f"v_exp_f32 v{MLr[w]}, v{MLr[w]}")
    e(f"v_mul_f32 v{vL1}, v{MLr[0]}, v{MLr[0]+1}")
    for w in range(1, 4):
        e(f"v_fma_f32 v{vL1}, v{MLr[w]}, v{MLr[w]+1}, v{vL1}")
    for r in range(4):
        e(f"v_mul_f32 v{vO+r}, v{vO+r}, v{MLr[0]}")
    e("s_waitcnt lgkmcnt(0)")
    for w in range(1, 4):
        for r in range(4):
            e(f"v_fma_f32 v{vO+r}, v{OW[w]+r}, v{MLr[w]}, v{vO+r}")
    e(f"v_and_b32 v{a16}, 15, v{vLANE}")
    e(f"v_lshlrev_b32 v{a8}, 7, v{a16}")
    e(f"v_lshlrev_b32 v{a16}, 10, v{a16}")
    e(f"v_lshrrev_b32 v{vX}, 4, v{vLANE}")
    e(f"v_lshl_add_u32 v{a16}, v{vX}, 4, v{a16}")
    e(f"s_lshl_b32 {sA}, {sHK}, 14")
    e(f"s_lshl_b32 {sB}, {sSP}, 6")
    e(f"s_add_u32 {sA}, {sA}, {sB}")
    add_base(sA, O_RAO)
    e(f"buffer_store_dwordx4 {vr(vO)}, v{a16}, {S_WS}, {sA} offen sc1")
    e(f"s_lshl_b32 {sA}, {sHK}, 11")
    e(f"s_lshl_b32 {sB}, {sSP}, 3")
    e(f"s_add_u32 {sA}, {sA}, {sB}")
    add_base(sA, O_RAML)
    e("s_mov_b64 exec, 0xffff")
    e(f"buffer_store_dwordx2 {vr(vL0, 2)}, v{a8}, {S_WS}, {sA} offen sc1")
    e("s_mov_b64 exec, -1")
    g.flush()
    g.label(skA)
    T("A done")
    ao, am = vC0, vC0 + 1
    e(f"v_and_b32 v{am}, 15, v{vLANE}")
    e(f"v_lshlrev_b32 v{ao}, 6, v{am}")
    e(f"v_lshlrev_b32 v{am}, 3, v{am}")
    e(f"v_lshrrev_b32 v{vX}, 4, v{vLANE}")
    e(f"v_lshl_add_u32 v{ao}, v{vX}, 4, v{ao}")
    e(f"s_lshl_b32 {sB}, s2, 7")
    add_base(sB, O_RAML)
    e(f"s_lshl_b32 {sA}, s2, 10")
    add_base(sA, O_RAO)

    def ldB():
        e(f"buffer_load_dwordx4 {vr(vO)}, v{ao}, {S_WS}, {sA} offen sc1")
        e(f"buffer_load_dwordx2 {vr(vL0, 2)}, v{am}, {S_WS}, {sB} offen sc1")
    poll(ldB, [vO, vO + 1, vO + 2, vO + 3, vL0, vL1], vX)
    T("B polled")
    e(f"v_mov_b32 v{vX}, v{vL0}")
    row_allreduce([vX], "v_min_f32")
    e(f"v_sub_f32 v{vX}, v{vX}, v{vL0}")
    e(f"v_exp_f32 v{vX}, v{vX}")
    e(f"v_mul_f32 v{vL1}, v{vL1}, v{vX}")
    for r in range(4):
        e(f"v_mul_f32 v{vO+r}, v{vO+r}, v{vX}")
    row_allreduce([vL1, vO, vO + 1, vO + 2, vO + 3], "v_add_f32")
    e(f"v_rcp_f32 v{vL1}, v{vL1}")
    for r in range(4):
        e(f"v_mul_f32 v{vO+r}, v{vO+r}, v{vL1}")
    for r in range(4):
        e(f"v_cvt_pk_bf16_f32 v{vPK+r}, v{vO+r}, v{vO+r}")
    acc4 = vC0 + 2
    skb = g.newlabel("WB")
    for v in range(4):
        B = vS if v % 2 == 0 else vT
        for r in range(4):
            e(f"v_and_b32 v{B+r}, v{vPK+v}, v{vM[r]}")
        c = "0" if v == 0 else vr(vO)
        e(f"v_mfma_f32_16x16x32_bf16 {vr(vO)}, {vr(vQF+4*v)}, {vr(B)}, {c}")
    wave_is(3, skb)
    for v in range(4):
        B = vS if v % 2 == 0 else vT
        for r in range(4):
            e(f"v_and_b32 v{B+r}, v{vPK+v}, v{vM[r]}")
        c = "0" if v == 0 else vr(acc4)
        e(f"v_mfma_f32_16x16x32_bf16 {vr(acc4)}, {vr(vKF+4*v)}, {vr(B)}, {c}")
    g.flush()
    g.label(skb)
    publish_partials(O_PB, 256, "s2", vO, acc4)
    T("PB pub")
    sk = g.newlabel("EP")
    e(f"s_cmp_lg_u32 {sLAYER}, 0")
    e(f"s_cbranch_scc1 {sk}")
    if P["PFS"] == 0:
        e("s_cmp_eq_u32 s3, 0")
        e(f"s_cbranch_scc1 {sk}")
        e(f"s_cmp_eq_u32 {sROLE}, {ROLE_RED}")
        e(f"s_cbranch_scc1 {sk}")
    else:
        e(f"s_and_b32 {sA}, {sROLE}, 1")
        e(f"s_cmp_eq_u32 {sA}, 0")
        e(f"s_cbranch_scc1 {sk}")
    chain_prefetch()
    g.label(sk)
    g.flush()

    L_FFN, L_RED, L_Q, L_G = [g.newlabel(x) for x in ("FFN", "RED", "QP", "GG")]
    e(f"s_cmp_eq_u32 {sROLE}, {ROLE_FFN}")
    e(f"s_cbranch_scc1 {L_FFN}")
    e(f"s_cmp_eq_u32 {sROLE}, {ROLE_RED}")
    e(f"s_cbranch_scc1 {L_RED}")
    e(f"s_cmp_lg_u32 {sLAYER}, 0")
    e(f"s_cbranch_scc1 L_exit")
    e(f"s_cmp_eq_u32 {sROLE}, {ROLE_Q}")
    e(f"s_cbranch_scc1 {L_Q}")
    e(f"s_branch {L_G}")

    g.label(L_FFN)
    g.flush()
    la = vC0 + 3
    sk = g.newlabel("FX")
    wave_is(0, sk)
    e(f"s_and_b32 {sA}, {sF}, {NREP - 1}")
    e(f"s_mul_i32 {sA}, {sA}, {REPS}")
    add_base(sA, O_XB0)
    gather_x(S_WS, sA, " sc1", True)
    T("x polled")
    layernorm_to_Y(False)
    g.flush()
    g.label(sk)
    gemv18_compute()
    T("gemv done")
    ad, t = vC0, vC0 + 1
    e(f"v_lshlrev_b32 v{la}, 4, v{vLANE}")
    e(f"v_add_u32 v{la}, {sLW}, v{la}")
    e(f"v_bfe_u32 v{ad}, v{vLANE}, 3, 1")
    e(f"v_lshlrev_b32 v{ad}, 5, v{ad}")
    e(f"v_lshrrev_b32 v{t}, 4, v{vLANE}")
    e(f"v_lshl_add_u32 v{ad}, v{t}, 3, v{ad}")
    e(f"v_and_b32 v{t}, 7, v{vLANE}")
    e(f"v_add_u32 v{ad}, v{ad}, v{t}")
    e(f"v_lshlrev_b32 v{ad}, 2, v{ad}")
    e(f"v_add_u32 v{ad}, {SCR_RED}, v{ad}")

    def rd_wd():
        for k in range(4):
            e(f"ds_read_b128 {vr(vQF+4*k)}, v{la} offset:{LDS_WD + 1024*k}")
    red_sum8(ad, vX, rd_wd, 4)
    e(f"v_cvt_pk_bf16_f32 v{vX}, v{vX}, v{vX}")
    e(f"v_and_b32 v{vX}, 0xffff0000, v{vX}")
    e(f"v_mov_b32_dpp v{vY}, v{vX} row_ror:8 row_mask:0xf bank_mask:0xf")
    G, U = vS, vS + 1
    e(f"v_cndmask_b32 v{G}, v{vY}, v{vX}, {M_N8}")
    e(f"v_cndmask_b32 v{U}, v{vX}, v{vY}, {M_N8}")
    z, w = vS + 2, vS + 3
    e(f"v_mul_f32 v{z}, v{G}, v{G}")
    e(f"v_mov_b32 v{w}, {f32(0.7978845608028654)}")
    e(f"v_mul_f32 v{z}, {f32(0.7978845608028654 * 0.044715)}, v{z}")
    e(f"v_add_f32 v{z}, v{z}, v{w}")
    e(f"v_mul_f32 v{z}, v{z}, v{G}")
    e(f"v_mul_f32 v{z}, {f32(-2.0 * 1.4426950408889634)}, v{z}")
    e(f"v_exp_f32 v{z}, v{z}")
    e(f"v_add_f32 v{z}, 1.0, v{z}")
    e(f"v_rcp_f32 v{z}, v{z}")
    e(f"v_mul_f32 v{z}, v{z}, v{G}")
    e(f"v_cvt_pk_bf16_f32 v{z}, v{z}, v{z}")
    e(f"v_and_b32 v{z}, 0xffff0000, v{z}")
    e(f"v_mul_f32 v{z}, v{z}, v{U}")
    e(f"v_cvt_pk_bf16_f32 v{vPK}, v{z}, v{z}")
    acc4 = vC0 + 4
    for k in range(8):
        B = vKF + 4 * (k % 4)
        for r in range(4):
            e(f"v_and_b32_dpp v{B+r}, v{vPK}, v{vM[r]} row_newbcast:{k} row_mask:0xf bank_mask:0xf")
        e(f"s_waitcnt lgkmcnt({3 if k < 4 else 7 - k})")
        c = "0" if k == 0 else vr(vO)
        e(f"v_mfma_f32_16x16x32_bf16 {vr(vO)}, {vr(vQF+4*(k%4))}, {vr(B)}, {c}")
        if k < 4:
            e("s_nop 3")
            e(f"ds_read_b128 {vr(vQF+4*k)}, v{la} offset:{LDS_WD + 1024*(k+4)}")
    skb = g.newlabel("DB")
    wave_is(3, skb)
    H2 = vS
    for kk in range(4):
        e(f"v_mov_b32_dpp v{H2}, v{vPK} row_newbcast:{2*kk} row_mask:0xf bank_mask:0x3")
        e(f"v_mov_b32_dpp v{H2}, v{vPK} row_newbcast:{2*kk+1} row_mask:0xf bank_mask:0xc")
        B = vKF + 4 * kk
        for r in range(4):
            e(f"v_and_b32 v{B+r}, v{H2}, v{vM[r]}")
        c = "0" if kk == 0 else vr(acc4)
        e(f"v_mfma_f32_16x16x32_bf16 {vr(acc4)}, {ar(A_WD5+4*kk)}, {vr(B)}, {c}")
    for r in range(4):
        e(f"v_mov_b32_dpp v{vT+r}, v{acc4+r} row_ror:8 row_mask:0xf bank_mask:0xf")
    for r in range(4):
        e(f"v_mov_b32 v{vKF+r}, v{vT+r}")
    for r in range(4):
        e(f"v_permlane32_swap_b32 v{vKF+r}, v{vT+r}")
    for r in range(4):
        e(f"v_add_f32 v{acc4+r}, v{acc4+r}, v{vT+r}")
    g.flush()
    g.label(skb)
    publish_partials(O_PD, 144, sF, vO, acc4)
    T("PD pub")
    e(f"s_cmp_lg_u32 {sLAYER}, 0")
    e(f"s_cbranch_scc1 L_exit")
    if P["PFS"]:
        chain_prefetch()
    e(f"s_branch {L_G}")

    g.label(L_RED)
    g.flush()
    xs = vXS
    for stage in range(2):
        nprod = 256 if stage == 0 else 144
        per = nprod // 4
        nl = (per + 7) // 8
        ad = vC0
        e(f"v_lshlrev_b32 v{ad}, 4, v{vLANE}")
        e(f"s_mul_i32 {sA}, {sF}, {nprod * 128}")
        e(f"s_mul_i32 {sB}, s3, {per * 128}")
        e(f"s_add_u32 {sA}, {sA}, {sB}")
        add_base(sA, O_PB if stage == 0 else O_PD)
        if stage == 1:
            for r in range(4):
                e(f"v_mov_b32 v{vKF+16+r}, 0")
        e(f"s_add_u32 {sB}, {sA}, 4096")

        def ldR():
            for k in range(nl):
                if stage == 1 and k == 4:
                    e("s_mov_b64 exec, 0xffffffff")
                so, off = (sA, 1024 * k) if k < 4 else (sB, 1024 * (k - 4))
                e(f"buffer_load_dwordx4 {vr(vKF+4*k)}, v{ad}, {S_WS}, {so} offen offset:{off} sc1")
            if stage == 1:
                e("s_mov_b64 exec, -1")
        poll(ldR, range(vKF, vKF + 4 * nl), vX)
        T("C polled" if stage == 0 else "E polled")
        regs = [vKF + 4 * k for k in range(nl)]
        while len(regs) > 1:
            nxt = []
            for a in range(0, len(regs) - 1, 2):
                for r in range(4):
                    e(f"v_add_f32 v{regs[a]+r}, v{regs[a]+r}, v{regs[a+1]+r}")
                nxt.append(regs[a])
            if len(regs) % 2:
                nxt.append(regs[-1])
            regs = nxt
        R4 = [vKF + r for r in range(4)]
        row_allreduce(R4, "v_add_f32", shifts=(8,))
        cross_rows(R4, [vKF + 4 + r for r in range(4)], "v_add_f32")
        e(f"v_and_b32 v{ad}, 7, v{vLANE}")
        e(f"v_lshlrev_b32 v{ad}, 4, v{ad}")
        e(f"v_add_u32 v{ad}, {SCR_R2 + 0}, v{ad}")
        e(f"s_lshl_b32 {sA}, s3, 7")
        e(f"v_add_u32 v{vY}, {sA}, v{ad}")
        e("s_mov_b64 exec, 0xff")
        e(f"ds_write_b128 v{vY}, {vr(vKF)}")
        e("s_mov_b64 exec, -1")
        e("s_waitcnt lgkmcnt(0)")
        e("s_barrier")
        for w in range(4):
            e(f"ds_read_b128 {vr(vKF+4*w)}, v{ad} offset:{128*w}")
        e("s_waitcnt lgkmcnt(0)")
        for r in range(4):
            e(f"v_add_f32 v{vKF+r}, v{vKF+r}, v{vKF+4+r}")
            e(f"v_add_f32 v{vKF+8+r}, v{vKF+8+r}, v{vKF+12+r}")
        for r in range(4):
            e(f"v_add_f32 v{vKF+r}, v{vKF+r}, v{vKF+8+r}")
        if stage == 0:
            e("s_barrier")
        e(f"v_cvt_pk_bf16_f32 v{vS}, v{vKF}, v{vKF+1}")
        e(f"v_cvt_pk_bf16_f32 v{vS+1}, v{vKF+2}, v{vKF+3}")
        for r in range(4):
            if r % 2 == 0:
                e(f"v_lshlrev_b32 v{vT+r}, 16, v{vS+r//2}")
            else:
                e(f"v_and_b32 v{vT+r}, 0xffff0000, v{vS+r//2}")
        for r in range(4):
            e(f"v_add_f32 v{vT+r}, v{vT+r}, v{xs+r}")
        e(f"v_cvt_pk_bf16_f32 v{vS}, v{vT}, v{vT+1}")
        e(f"v_cvt_pk_bf16_f32 v{vS+1}, v{vT+2}, v{vT+3}")
        for r in range(4):
            if r % 2 == 0:
                e(f"v_lshlrev_b32 v{xs+r}, 16, v{vS+r//2}")
            else:
                e(f"v_and_b32 v{xs+r}, 0xffff0000, v{vS+r//2}")

        def pub_x(off):
            e(f"v_lshrrev_b32 v{ad}, 3, v{vLANE}")
            e(f"v_mul_u32_u24 v{ad}, {REPS}, v{ad}")
            e(f"v_and_b32 v{vY}, 7, v{vLANE}")
            e(f"v_lshl_add_u32 v{ad}, v{vY}, 3, v{ad}")
            e(f"s_mul_i32 {sA}, s3, {8 * REPS}")
            e(f"s_lshl_b32 {sB}, {sF}, 6")
            e(f"s_add_u32 {sA}, {sA}, {sB}")
            add_base(sA, off)
            e(f"buffer_store_dwordx2 {vr(vS, 2)}, v{ad}, {S_WS}, {sA} offen sc1")
        if stage == 0:
            pub_x(O_XB0)
            T("C pub")
        else:
            sk, sk2 = g.newlabel("OUT"), g.newlabel("OUT2")
            e(f"s_cmp_lg_u32 {sLAYER}, 0")
            e(f"s_cbranch_scc1 {sk}")
            pub_x(O_XB1)
            T("E pub")
            if P["PFS"]:
                chain_prefetch()
            e(f"s_branch {L_G}")
            g.label(sk)
            g.flush()
            wave_is(0, sk2)
            e(f"s_lshl_b32 {sA}, {sF}, 6")
            e(f"v_lshlrev_b32 v{ad}, 1, v{vLANE}")
            for r in range(4):
                e(f"v_lshrrev_b32 v{vT+r}, 16, v{xs+r}")
            e("s_mov_b64 exec, 0xff")
            for r in range(4):
                e(f"buffer_store_short v{vT+r}, v{ad}, {S_OUT}, {sA} offen offset:{16*r}")
            e("s_mov_b64 exec, -1")
            g.label(sk2)
            T("E pub")
            e("s_branch L_exit")

    g.label(L_Q)
    g.flush()

    def gq():
        e(f"s_lshl_b32 {sA}, {sHK}, 2")
        e(f"s_add_u32 {sA}, {sA}, {sF}")
        e(f"s_and_b32 {sA}, {sA}, {NREP - 1}")
        e(f"s_mul_i32 {sA}, {sA}, {REPS}")
        e(f"s_add_u32 {sA}, {sA}, {O_XB1}")
        gather_x(S_WS, sA, " sc1", True)
        T("x2 polled")
    q_project(gq, False)
    T("q pub")
    g.label(L_G)
    g.flush()
    sk, w0, j = g.newlabel("GP"), g.newlabel("W0"), g.newlabel("WJ")
    if P["PFS"]:
        wave_is(0, j)
    else:
        e("s_cmp_eq_u32 s3, 0")
        e(f"s_cbranch_scc1 {w0}")
        e(f"s_cmp_eq_u32 {sROLE}, {ROLE_RED}")
        e(f"s_cbranch_scc0 {j}")
        chain_prefetch()
        e(f"s_branch {j}")
        g.label(w0)
        g.flush()
        chain_prefetch()
    load_q_poll(O_QB)
    ad = vC0 + 2
    e(f"v_lshlrev_b32 v{ad}, 4, v{vLANE}")
    e(f"v_add_u32 v{ad}, {SCR_Q}, v{ad}")
    for s_ in range(4):
        e(f"ds_write_b128 v{ad}, {vr(vQF+4*s_)} offset:{1024*s_}")
    e("s_waitcnt lgkmcnt(0)")
    g.label(j)
    g.flush()
    e("s_barrier")
    ad = vC0 + 2
    e(f"v_lshlrev_b32 v{ad}, 4, v{vLANE}")
    e(f"v_add_u32 v{ad}, {SCR_Q}, v{ad}")
    for s_ in range(4):
        e(f"ds_read_b128 {vr(vQF+4*s_)}, v{ad} offset:{1024*s_}")
    e(f"s_mov_b32 {sLAYER}, 1")
    e(f"s_mov_b32 {sBASE}, {BLK}")
    e("s_waitcnt lgkmcnt(0)")
    T("q ready")
    e(f"s_mov_b32 {sTSB}, {TS_PER}")


class RPhase:
    def __init__(s):
        s.ringc = 0
        s.slot_of = {}
        s.busy = {}

    def clone(s):
        c = RPhase()
        c.ringc, c.slot_of, c.busy = s.ringc, dict(s.slot_of), dict(s.busy)
        return c

    def issue(s, u):
        kind, idx = u
        if kind == "R":
            e(f"s_add_u32 {sT}, {sKVR}, {idx * 4096}")
            if HK[idx][0] == "l":
                slot = HK[idx][1]
            else:
                slot = s.ringc % RING
                s.ringc += 1
                assert slot not in s.busy, (u, slot, s.busy)
                s.busy[slot] = u
            s.slot_of[u] = slot
            issue_tile(sT, slot * 4096, hreg(HV[idx]), u)
        elif kind == "S":
            assert idx % RING not in s.busy, (u, s.busy)
            issue_S_static(idx)
        elif kind == "WG":
            gemv18_setup("ffn")
            gemv18_loads("ffn", range(9 * idx, 9 * idx + 9), ("K", u))
        elif kind == "WD":
            wdown_loads(("K", u))
        else:
            raise ValueError(u)

    def complete(s, u):
        kind, idx = u
        g.wait_vm(("K", u))
        via = kind == "R" and HK[idx][0] != "l"
        if via:
            kreg = hreg(HK[idx])
            for s_ in range(4):
                e(f"ds_read_b128 {kreg(s_)}, v{vDSK[s_]} offset:{s.slot_of[u] * 4096}")
        if kind in ("R", "S"):
            g.wait_vm(("V", u))
        if via:
            e("s_waitcnt lgkmcnt(0)")
            del s.busy[s.slot_of[u]]


def main():
    hdr = []
    ref = open(os.path.join(os.path.dirname(__file__), "..", "cdna_kernels", NAME + ".s.ref")).read().split("\n")
    for ln in ref:
        if ln.startswith("; @launch"):
            hdr.append(f"; @launch grid=(256,1,1) block=(256,1,1) lds={LDS_BYTES}")
        elif ln.startswith(";"):
            hdr.append(ln)
        else:
            break
    g.raw("\n".join(hdr))
    g.raw('.amdgcn_target "amdgcn-amd-amdhsa--gfx950"')
    g.raw(".text")
    g.raw(f".globl {NAME}_kernel")
    g.raw(".p2align 8")
    g.raw(f".type {NAME}_kernel,@function")
    g.raw(f"{NAME}_kernel:")
    e("s_cmp_ge_u32 s2, 256")
    e("s_cbranch_scc1 L_quit")
    srds = [(4, 8, KV_BYTES), (8, 16, KV_BYTES), (12, 24, 576 * 8192), (16, 32, 4096 * 1152),
            (20, 48, 576 * 9216), (24, 56, 576 * 9216), (28, 64, 4608 * 1152), (32, 88, WS_SIZE),
            (36, 80, 256), (40, 0, 1152), (44, 72, 1152), (48, 88, WS_SIZE)]
    for s, off, size in srds:
        e(f"s_load_dwordx2 s[{s}:{s+1}], s[0:1], {off}")
    for s, off, size in srds:
        e(f"s_mov_b32 s{s+2}, {size}")
        e(f"s_mov_b32 s{s+3}, 0x00020000")
    if P["DEBUG_TS"]:
        e(f"v_mov_b32 v{vTS}, 0")
    e(f"s_mov_b32 {sTSB}, 0")
    e(f"s_mov_b32 {sLAYER}, 0")
    e(f"s_mov_b32 {sBASE}, 0")
    e(f"s_mov_b32 {sMUL}, 4096")
    e("v_lshrrev_b32 v1, 6, v0")
    e("v_and_b32 v0, 63, v0")
    e("v_readfirstlane_b32 s3, v1")
    e(f"s_lshr_b32 {sHK}, s2, 4")
    e(f"s_and_b32 {sSP}, s2, 15")
    e(f"s_lshl_b32 {sA}, {sHK}, 24")
    e(f"s_lshl_b32 {sB}, {sSP}, 2")
    e(f"s_add_u32 {sB}, {sB}, s3")
    e(f"s_mul_i32 {sD}, {sB}, {NR_H * 4096}")
    e(f"s_sub_u32 {sT}, {sB}, {NHEAVY * 4}")
    e(f"s_mul_i32 {sT}, {sT}, {NR_L * 4096}")
    e(f"s_add_u32 {sT}, {sT}, {NHEAVY * 4 * NR_H * 4096}")
    e(f"s_cmp_lt_u32 {sSP}, {NHEAVY}")
    e(f"s_cselect_b32 {sB}, {sD}, {sT}")
    e(f"s_add_u32 {sKVR}, {sA}, {sB}")
    e(f"s_mul_i32 {sB}, s3, {NS * 4096}")
    e(f"s_add_u32 {sKVS}, {sA}, {sB}")
    e(f"s_add_u32 {sKVS}, {sKVS}, {R_TOT * 4096}")
    e(f"s_mul_i32 {sLW}, s3, {WAVE_LDS}")
    e(f"s_mov_b32 {sC}, {f32(128 ** -0.5 * 1.4426950408889634)}")
    e(f"s_mov_b32 {sTHR}, {f32(8.0)}")
    lr = g.newlabel("RL")
    e(f"s_mov_b32 {sROLE}, {ROLE_FFN}")
    e(f"s_mul_i32 {sF}, {sHK}, 9")
    e(f"s_add_u32 {sF}, {sF}, {sSP}")
    e(f"s_cmp_lt_u32 {sSP}, 9")
    e(f"s_cbranch_scc1 {lr}")
    e(f"s_mov_b32 {sROLE}, {ROLE_Q}")
    e(f"s_sub_u32 {sF}, {sSP}, 9")
    e(f"s_cmp_lt_u32 {sSP}, 13")
    e(f"s_cbranch_scc1 {lr}")
    e(f"s_mov_b32 {sROLE}, {ROLE_RED}")
    e(f"s_mov_b32 {sF}, {sHK}")
    e(f"s_cmp_eq_u32 {sSP}, 13")
    e(f"s_cbranch_scc1 {lr}")
    e(f"s_add_u32 {sF}, {sHK}, 16")
    e(f"s_cmp_eq_u32 {sSP}, 14")
    e(f"s_cselect_b32 {sA}, 1, 0")
    e(f"s_cmp_lt_u32 {sHK}, 2")
    e(f"s_cselect_b32 {sA}, {sA}, 0")
    e(f"s_cmp_eq_u32 {sA}, 1")
    e(f"s_cbranch_scc1 {lr}")
    e(f"s_mov_b32 {sROLE}, {ROLE_NONE}")
    g.label(lr)
    for m, val in ((66, 0x00FF00FF00FF00FF), (68, 0xFF00FF0000FF00FF), (70, 0x0F0F0F0F0F0F0F0F), (72, 0xF0F0F0F0F0F0F0F0), (74, 0x5555555555555555)):
        e(f"s_mov_b32 s{m}, 0x{val & 0xffffffff:08x}")
        e(f"s_mov_b32 s{m+1}, 0x{val >> 32:08x}")
    e("v_lshrrev_b32 v1, 4, v0")
    e("v_and_b32 v2, 15, v0")
    e("v_xor_b32 v38, v1, v2")
    for t in range(4):
        e(f"v_xor_b32 v{vX}, {4*t}, v38")
        e(f"v_lshlrev_b32 v{vX}, 4, v{vX}")
        e(f"v_lshl_add_u32 v{vKOFF[t]}, v1, 8, v{vX}")
        e(f"v_lshl_add_u32 v{vDSK[t]}, v2, 8, v{vX}")
        e(f"v_add_u32 v{vDSK[t]}, {sLW}, v{vDSK[t]}")
    e(f"v_lshlrev_b32 v{vVOFF}, 10, v1")
    e(f"v_lshl_add_u32 v{vVOFF}, v2, 4, v{vVOFF}")
    if P["EXP"] & 2:
        e(f"v_lshlrev_b32 v{vVOFF}, 4, v0")
    if P["EXP"] & 4:
        for t in range(4):
            e(f"v_lshlrev_b32 v{vKOFF[t]}, 4, v0")
    e("v_and_b32 v38, 1, v0")
    e("v_cmp_eq_u32 vcc, 1, v38")
    e(f"v_mov_b32 v{vX}, 0x0000ffff")
    e(f"v_mov_b32 v{vY}, 0xffff0000")
    e(f"v_cndmask_b32 v{vX}, v{vX}, v{vY}, vcc")
    e("v_bfe_u32 v38, v0, 1, 2")
    for r in range(4):
        e(f"v_cmp_eq_u32 vcc, {r}, v38")
        e(f"v_cndmask_b32 v{vM[r]}, 0, v{vX}, vcc")
    e("s_waitcnt lgkmcnt(0)")
    ts("start")
    L_NQ, L_ST = g.newlabel("NQ"), g.newlabel("ST")
    e(f"s_cmp_eq_u32 {sROLE}, {ROLE_Q}")
    e(f"s_cbranch_scc0 {L_NQ}")
    sk = g.newlabel("X0")
    wave_is(0, sk)
    gather_x(S_X, "0", "", False)
    g.label(sk)
    gemv18_setup("q")
    gemv18_loads("q", range(18))
    g.label(L_NQ)
    e(f"v_mov_b32 v{vS}, -1")
    for r in range(1, 4):
        e(f"v_mov_b32 v{vS+r}, -1")
    e(f"v_lshlrev_b32 v{vX}, 4, v0")
    e(f"s_mul_i32 {sA}, s2, {CLR_PER_WG}")
    e(f"s_lshl_b32 {sB}, s3, 10")
    e(f"s_add_u32 {sA}, {sA}, {sB}")
    e(f"buffer_store_dwordx4 {vr(vS)}, v{vX}, {S_WS}, {sA} offen sc1")
    e(f"s_add_u32 {sA}, {sA}, 4096")
    e(f"buffer_store_dwordx4 {vr(vS)}, v{vX}, {S_WS}, {sA} offen sc1")
    sk = g.newlabel("CLR")
    e("s_cmp_lt_u32 s3, 3")
    e(f"s_cbranch_scc0 {sk}")
    e(f"s_add_u32 {sA}, {sA}, 4096")
    sk2 = g.newlabel("CLRH")
    e("s_cmp_eq_u32 s3, 2")
    e(f"s_cbranch_scc0 {sk2}")
    e("s_mov_b64 exec, 0xffffffff")
    g.label(sk2)
    e(f"buffer_store_dwordx4 {vr(vS)}, v{vX}, {S_WS}, {sA} offen sc1")
    e("s_mov_b64 exec, -1")
    g.label(sk)
    sk = g.newlabel("CZ")
    e("s_cmp_eq_u32 s3, 3")
    e(f"s_cbranch_scc0 {sk}")
    e("s_cmp_lt_u32 s2, 128")
    e(f"s_cbranch_scc0 {sk}")
    e(f"s_lshl_b32 {sA}, s2, 8")
    e(f"s_add_u32 {sA}, {sA}, {O_CNT}")
    e(f"v_mov_b32 v{vY}, 0")
    e("s_mov_b64 exec, 1")
    e(f"buffer_store_dword v{vY}, v{vY}, {S_WS}, {sA} offen sc1")
    e("s_mov_b64 exec, -1")
    g.label(sk)
    sk = g.newlabel("RX")
    e(f"s_cmp_eq_u32 {sROLE}, {ROLE_RED}")
    e(f"s_cbranch_scc0 {sk}")
    e(f"s_lshl_b32 {sA}, {sF}, 6")
    e(f"v_and_b32 v{vY}, 7, v0")
    e(f"v_lshlrev_b32 v{vY}, 1, v{vY}")
    for r in range(4):
        e(f"buffer_load_ushort v{vXS+r}, v{vY}, {S_X}, {sA} offen offset:{16*r}")
    g.label(sk)
    e(f"s_cmp_eq_u32 {sROLE}, {ROLE_Q}")
    e(f"s_cbranch_scc0 {L_ST}")
    sk = g.newlabel("LN0")
    wave_is(0, sk)
    e("s_waitcnt vmcnt(0)")
    layernorm_to_Y(True)
    g.flush()
    g.label(sk)
    q_project(None, True)
    ts("q pub")
    g.label(L_ST)
    g.flush()
    common = [("R", r) for r in range(NR_H) if HK[r][0] != "l"] + [("R", r) for r in range(NR_H) if HK[r][0] == "l"]
    Sun = [("S", i) for i in range(RING)]
    paths = {
        "light": common + [("R", NR_H + 2), ("R", NR_H + 3), ("R", NR_H), ("R", NR_H + 1)] + Sun,
        "ffn": common + [("WG", 0), ("WG", 1), ("WD", 0)] + Sun,
        "q": common + Sun,
    }
    restore_nr()
    g.vmq = [("st", 0)]
    rp = RPhase()
    for k in range(DR):
        rp.issue(common[k])
    kfork = len(common) - DR
    K_CLR = 3
    assert K_CLR < kfork
    for k in range(kfork):
        rp.complete(common[k])
        if P["DEBUG_TS"] >= 2 and k in (0, 2, 5):
            ts(f"unit {k}")
        if k == K_CLR:
            e("s_barrier")
            sk = g.newlabel("CS")
            wave_is(0, sk)
            e(f"v_mov_b32 v{vX}, 64")
            e(f"v_mov_b32 v{vY}, 1")
            e("s_mov_b64 exec, 1")
            e(f"buffer_atomic_add v{vY}, v{vX}, {S_DBG}, 0 offen")
            e("s_mov_b64 exec, -1")
            g.label(sk)
            for r in range(4):
                e(f"v_lshlrev_b32 v{vXS+r}, 16, v{vXS+r}")
            ts("clr sig")
        rp.issue(common[k + DR])
    L_JOIN = g.newlabel("RJ")
    labs = {n: g.newlabel("RP") for n in paths}
    e(f"s_cmp_eq_u32 {sROLE}, {ROLE_FFN}")
    e(f"s_cbranch_scc1 {labs['ffn']}")
    e(f"s_cmp_eq_u32 {sROLE}, {ROLE_Q}")
    e(f"s_cbranch_scc1 {labs['q']}")
    g.flush()
    vm0 = list(g.vmq)
    for n in ("light", "ffn", "q"):
        units = paths[n]
        g.label(labs[n])
        g.flush()
        g.vmq = list(vm0)
        r2 = rp.clone()
        KF_FLAG, KF_Q = kfork, kfork + 2
        for k in range(kfork, len(units)):
            u = units[k]
            if k + DR < len(units) or u[0] != "S":
                r2.complete(u)
            if k == KF_FLAG:
                e(f"s_lshl_b32 {sA}, {sHK}, 2")
                e(f"v_mov_b32 v{vX}, {sA}")
                g.vm(f"buffer_load_dword v{vY}, v{vX}, {S_DBG}, 0 offen sc1", ("flag", 0))
            if k == KF_Q:
                g.wait_vm(("flag", 0))
                lp, dn = g.newlabel("QF"), g.newlabel("QD")
                e(f"s_mov_b32 {sSPIN}, {P['SPIN']}")
                g.label(lp)
                e(f"v_cmp_ne_u32 vcc, 4, v{vY}")
                e(f"s_cbranch_vccz {dn}")
                e(f"buffer_load_dword v{vY}, v{vX}, {S_DBG}, 0 offen sc1")
                e("s_waitcnt vmcnt(0)")
                e(f"s_sub_u32 {sSPIN}, {sSPIN}, 1")
                e(f"s_cmp_lg_u32 {sSPIN}, 0")
                e(f"s_cbranch_scc1 {lp}")
                g.label(dn)
                ts("flag ok")
                q_addr(vC0, QB0)
                for s in range(4):
                    g.vm(f"buffer_load_dwordx4 {vr(vQF+4*s)}, v{vC0}, {S_WS}, {sA} offen offset:{64*s} sc1", ("q", 0))
            if k + DR < len(units):
                r2.issue(units[k + DR])
        g.wait_vm(("q", 0))
        g.flush()
        if n != "q":
            e(f"s_branch {L_JOIN}")
    g.label(L_JOIN)
    g.flush()
    ts("R loaded")
    g.label("L_pass")
    emit_pass()
    chain()
    e("s_branch L_pass")
    g.label("L_exit")
    if P["DEBUG_TS"]:
        ts("end")
        e(f"s_lshl_b32 {sA}, s2, 2")
        e(f"s_add_u32 {sA}, {sA}, s3")
        e(f"s_lshl_b32 {sA}, {sA}, 8")
        e(f"s_add_u32 {sA}, {sA}, {WS_TS}")
        e("s_mov_b64 exec, -1")
        e(f"v_lshlrev_b32 v1, 2, v{vLANE}")
        e(f"buffer_store_dword v{vTS}, v1, {S_WS}, {sA} offen")
    g.label("L_quit")
    e("s_endpgm")
    emit_stubs()
    g.raw(".section .rodata,\"a\"")
    g.raw(".p2align 6")
    g.raw(f".amdhsa_kernel {NAME}_kernel")
    g.raw("  .amdhsa_next_free_vgpr 512")
    g.raw("  .amdhsa_next_free_sgpr 102")
    g.raw("  .amdhsa_accum_offset 256")
    g.raw("  .amdhsa_group_segment_fixed_size 0")
    g.raw("  .amdhsa_kernarg_size 96")
    g.raw("  .amdhsa_user_sgpr_count 2")
    g.raw("  .amdhsa_user_sgpr_kernarg_segment_ptr 1")
    g.raw("  .amdhsa_system_sgpr_workgroup_id_x 1")
    g.raw(".end_amdhsa_kernel")
    out = os.environ.get("OUT", os.path.join(os.path.dirname(__file__), "..", "cdna_kernels", NAME + ".s"))
    txt = g.text()
    if P["DEBUG_TS"]:
        txt = txt.replace("; @launch", "; TSNAMES " + json.dumps(TSN) + "\n; @launch", 1)
    open(out, "w").write(txt)
    print("instructions:", g.count, "bytes:", len(txt), "NR", NR_H, NR_L, "NS", NS, "J0", J0, "K0", K0)


main()
```
